```python
import torch

def _softmax(x, axis=-1):
    return torch.softmax(x, dim=axis)
def _gelu(x):
    return torch.nn.functional.gelu(x, approximate="tanh")
def _silu(x):
    return torch.nn.functional.silu(x)
def _sigmoid(x):
    return torch.sigmoid(x)
def _layernorm(x, axis=-1, eps=1e-5):
    m = x.mean(dim=axis, keepdim=True)
    v = x.var(dim=axis, keepdim=True, unbiased=False)
    return (x - m) / torch.sqrt(v + eps)
def _scatter_add(tgt, idx, src, axis=0):
    return tgt.clone().index_add_(axis, idx, src)
def _segment_sum(src, seg, n):
    out = torch.zeros((n,) + src.shape[1:], dtype=src.dtype)
    return out.index_add_(0, seg, src)
def _pad(x, pw):
    flat = tuple(v for pair in reversed(pw) for v in pair)
    return torch.nn.functional.pad(x, flat)

kernel_name = 'recurrent_scan__ssm_conv_s5__mixer_channel_mlp__prompt'

def setup_inputs():

    _w = (lambda a: (lambda t: t.to(torch.bfloat16) if t.is_floating_point() else t)(torch.as_tensor(a)))
    def _A_setup():
        B, S, D = 1, 2048, 1024
        P = D
        Lambda_re = -0.5 * (lambda _x: torch.exp(torch.as_tensor(_x)))((lambda *s: torch.randn(*s, dtype=torch.bfloat16) * 0.8)(P))
        Lambda_im = (lambda *s: torch.randn(*s, dtype=torch.bfloat16) * 0.8)(P) * 1.0
        B_re = (lambda *s: torch.randn(*s, dtype=torch.bfloat16) * 0.8)(P, D) * (D ** -0.5)
        B_im = (lambda *s: torch.randn(*s, dtype=torch.bfloat16) * 0.8)(P, D) * (D ** -0.5)
        C_re = (lambda *s: torch.randn(*s, dtype=torch.bfloat16) * 0.8)(D, P) * (P ** -0.5)
        C_im = (lambda *s: torch.randn(*s, dtype=torch.bfloat16) * 0.8)(D, P) * (P ** -0.5)
        log_dt = (lambda *s: torch.randn(*s, dtype=torch.bfloat16) * 0.8)(P) * 0.3 - 2.0
        Dskip = (lambda *s: torch.randn(*s, dtype=torch.bfloat16) * 0.4)(D)
        return {
            "x": _w((lambda *s: torch.randn(*s, dtype=torch.bfloat16) * 0.05)(B, S, D)),
            "Lambda_re": _w(Lambda_re),
            "Lambda_im": _w(Lambda_im),
            "B_re": _w(B_re),
            "B_im": _w(B_im),
            "C_re": _w(C_re),
            "C_im": _w(C_im),
            "log_dt": _w(log_dt),
            "Dskip": _w(Dskip),
        }
    _A_in = _A_setup()

    def _B_setup():
        B, S, D, F = 1, 2048, 1024, 3584
        return {
            "x": _w((lambda *s: torch.randn(*s, dtype=torch.bfloat16) * 0.05)(B, S, D)),
            "w1": _w((lambda *s: torch.randn(*s, dtype=torch.bfloat16) * 0.8)(D, F) * (D ** -0.5)),
            "b1": _w((lambda *s: torch.randn(*s, dtype=torch.bfloat16) * 0.8)(F)),
            "w2": _w((lambda *s: torch.randn(*s, dtype=torch.bfloat16) * 0.1)(F, D) * (F ** -0.5)),
            "b2": _w((lambda *s: torch.randn(*s, dtype=torch.bfloat16) * 0.1)(D)),
        }
    _B_in = _B_setup()

    return {
        "A_x": _A_in["x"],
        "A_Lambda_re": _A_in["Lambda_re"],
        "A_Lambda_im": _A_in["Lambda_im"],
        "A_B_re": _A_in["B_re"],
        "A_B_im": _A_in["B_im"],
        "A_C_re": _A_in["C_re"],
        "A_C_im": _A_in["C_im"],
        "A_log_dt": _A_in["log_dt"],
        "A_Dskip": _A_in["Dskip"],
        "B_x": _B_in["x"],
        "B_w1": _B_in["w1"],
        "B_b1": _B_in["b1"],
        "B_w2": _B_in["w2"],
        "B_b2": _B_in["b2"],
    }

def reference(A_x, A_Lambda_re, A_Lambda_im, A_B_re, A_B_im, A_C_re, A_C_im, A_log_dt, A_Dskip, B_x, B_w1, B_b1, B_w2, B_b2):
    def _A_ref(x, Lambda_re, Lambda_im, B_re, B_im, C_re, C_im, log_dt, Dskip):
        Bsz, L, H = x.shape
        Lam = Lambda_re + 1j * Lambda_im
        Bmat = B_re + 1j * B_im
        Cmat = C_re + 1j * C_im
        dt = torch.exp(log_dt)
        Lam_bar = torch.exp(dt * Lam)
        B_bar = ((Lam_bar - 1.0) / Lam)[:, None] * Bmat
        Bu = torch.einsum("bld,pd->blp", x + 0j, B_bar)
        h = torch.zeros_like(Bu[:, 0, :])
        hs = []
        for t in range(L):
            h = Lam_bar[None, :] * h + Bu[:, t, :]
            hs.append(h)
        hseq = torch.stack(hs, 1)
        y = 2.0 * torch.einsum("blp,dp->bld", hseq, Cmat).real + x * Dskip[None, None, :]
        return y

    def _B_ref(x, w1, b1, w2, b2):
        y = _layernorm(x, axis=-1)
        h = _gelu(torch.einsum("bsd,df->bsf", y, w1) + b1)
        return torch.einsum("bsf,fd->bsd", h, w2) + b2

    x = A_x
    xn = _layernorm(x, axis=-1)
    s = _A_ref(xn, A_Lambda_re, A_Lambda_im, A_B_re, A_B_im, A_C_re, A_C_im, A_log_dt, A_Dskip)
    g = _silu(_B_ref(xn, B_w1, B_b1, B_w2, B_b2))
    return x + s * g
```

```python
import struct


def f2u(x):
    return struct.unpack('<I', struct.pack('<f', x))[0]


def hexf(x):
    return '0x%08x' % f2u(x)


class VM:
    def __init__(self, text, tag=None):
        self.text, self.tag = text, tag


class DS:
    def __init__(self, text, tag=None):
        self.text, self.tag = text, tag


class Wait:
    def __init__(self, key, vm=None, lg=None):
        self.key, self.vm, self.lg = key, vm, lg


class Tracker:
    def __init__(self):
        self.vmq, self.lgq = [], []
        self.res = {}

    @staticmethod
    def _need(q, tags):
        if tags is None:
            return None
        if tags == 'all':
            return 0
        last = -1
        for i, t in enumerate(q):
            if t in tags:
                last = i
        if last < 0:
            return None
        return len(q) - 1 - last

    def run(self, items):
        for it in items:
            if isinstance(it, VM):
                self.vmq.append(it.tag)
            elif isinstance(it, DS):
                self.lgq.append(it.tag)
            elif isinstance(it, Wait):
                nv = self._need(self.vmq, it.vm)
                nl = self._need(self.lgq, it.lg)
                if nv is not None:
                    nv = min(nv, 63)
                    self.vmq = self.vmq[len(self.vmq) - nv:] if nv else []
                if nl is not None:
                    nl = min(nl, 15)
                    self.lgq = self.lgq[len(self.lgq) - nl:] if nl else []
                ov, ol = self.res.get(it.key, (None, None))
                if nv is not None:
                    ov = nv if ov is None else min(ov, nv)
                if nl is not None:
                    ol = nl if ol is None else min(ol, nl)
                self.res[it.key] = (ov, ol)

    def text(self, it):
        if isinstance(it, (VM, DS)):
            return it.text
        if isinstance(it, Wait):
            v, l = self.res[it.key]
            parts = []
            if v is not None:
                parts.append('vmcnt(%d)' % v)
            if l is not None:
                parts.append('lgkmcnt(%d)' % l)
            return 's_waitcnt ' + ' '.join(parts) if parts else None
        return it


class Out:
    def __init__(self):
        self.lines = []
        self.n = 0

    def __call__(self, s):
        for l in s.split('\n'):
            l = l.strip()
            if l:
                self.lines.append(l if l.endswith(':') or l.startswith('.') else '    ' + l)

    def items(self, tr, items):
        for it in items:
            t = tr.text(it)
            if t:
                self(t)

    def label(self, base):
        self.n += 1
        return '%s_%d' % (base, self.n)

    def text(self):
        return '\n'.join(self.lines) + '\n'


def interleave(mfmas, fillers):
    out = list(fillers.get(-1, []))
    for i, m in enumerate(mfmas):
        out.append(m)
        out.extend(fillers.get(i, []))
    return out


def place(fillers, gap, *items):
    fillers.setdefault(gap, []).extend(items)


def vr(base, n=1):
    return 'v%d' % base if n == 1 else 'v[%d:%d]' % (base, base + n - 1)


def ar(base, n=1):
    return 'a%d' % base if n == 1 else 'a[%d:%d]' % (base, base + n - 1)


def sr(base, n=1):
    return 's%d' % base if n == 1 else 's[%d:%d]' % (base, base + n - 1)


def srd(o, s, ptr, nbytes, off=0):
    if off:
        o('s_add_u32 s%d, s%d, 0x%x' % (s, ptr, off))
        o('s_addc_u32 s%d, s%d, 0' % (s + 1, ptr + 1))
    else:
        o('s_mov_b32 s%d, s%d' % (s, ptr))
        o('s_mov_b32 s%d, s%d' % (s + 1, ptr + 1))
    if isinstance(nbytes, str):
        o('s_mov_b32 s%d, %s' % (s + 2, nbytes))
    else:
        o('s_mov_b32 s%d, 0x%x' % (s + 2, nbytes))
    o('s_mov_b32 s%d, 0x20000' % (s + 3))


def kernel_head(name):
    return '.globl %s\n.p2align 8\n.type %s,@function\n%s:\n' % (name, name, name)


def descriptor(name, arch, acc=0, sgpr=102):
    accum = (arch + 3) // 4 * 4
    total = accum + acc if acc else arch
    return '''.p2align 6
.amdhsa_kernel %s
  .amdhsa_next_free_vgpr %d
  .amdhsa_next_free_sgpr %d
  .amdhsa_accum_offset %d
  .amdhsa_group_segment_fixed_size 0
  .amdhsa_kernarg_size 136
  .amdhsa_user_sgpr_count 2
  .amdhsa_user_sgpr_kernarg_segment_ptr 1
  .amdhsa_system_sgpr_workgroup_id_x 1
  .amdhsa_float_denorm_mode_32 3
.end_amdhsa_kernel
''' % (name, total, sgpr, accum)
```

```python
import sys, math
from lib import *

MB = 1 << 20
WS_XN = 0
WS_A2 = 4 * MB
A2_BYTES = 176 * 131072
WS_PART = 26 * MB
WS_STATS = 34 * MB
WS_AGG = 34 * MB + 65536
WS_FLAG = 34 * MB + 131072
WS_CS = 34 * MB + 196608
WS_STAMP = 40 * MB
WS_USED = 41 * MB

LOG2E = 1.4426950408889634
K0N, K1N, K2N = 'ln_stats_kernel', 'inproj_scan_kernel', 'recurrent_scan__ssm_conv_s5__mixer_channel_mlp__prompt_kernel'


def stamp(o, opt, kidx, which, wsrd, wave_sgpr, tmpv=(250, 251, 252)):
    if not opt.get('stamp'):
        return
    L = o.label('st%d' % kidx)
    a, b, c = tmpv
    o(f'''s_cmp_lg_u32 s{wave_sgpr}, 0
    s_cbranch_scc1 {L}
    s_memrealtime s[96:97]
    s_memtime s[98:99]
    s_lshl_b32 s100, s2, 7
    s_add_u32 s100, s100, {WS_STAMP + kidx * 32768 + which * 16}
    s_waitcnt lgkmcnt(0)
    v_mov_b32 v{a}, s96
    v_mov_b32 v{a+1}, s97
    v_mov_b32 v{a+2}, s98
    v_mov_b32 v{a+3}, s99
    v_mov_b32 v{a-1}, s100
    buffer_store_dwordx4 v[{a}:{a+3}], v{a-1}, s[{wsrd}:{wsrd+3}], 0 offen
    s_waitcnt vmcnt(0)
    {L}:''')


def bf16_round(o, v):
    o(f'v_cvt_pk_bf16_f32 v{v}, v{v}, v{v}')
    o(f'v_lshlrev_b32 v{v}, 16, v{v}')


def k0(opt):
    o = Out()
    o(kernel_head(K0N))
    o('''s_cmp_ge_u32 s2, 256
    s_cbranch_scc1 k0_end
    s_load_dwordx2 s[4:5], s[0:1], 0
    s_load_dwordx2 s[6:7], s[0:1], 128
    v_lshrrev_b32 v6, 6, v0
    v_and_b32 v1, 63, v0
    v_and_b32 v2, 7, v1
    v_lshrrev_b32 v3, 3, v1
    v_readfirstlane_b32 s16, v6
    s_lshr_b32 s17, s2, 3
    s_bfe_u32 s18, s2, 0x20001
    s_and_b32 s19, s2, 1
    s_lshl_b32 s20, s17, 6
    s_lshl_b32 s21, s19, 5
    s_add_u32 s20, s20, s21
    s_lshl_b32 s21, s18, 2
    s_add_u32 s20, s20, s21
    v_lshrrev_b32 v7, 2, v2
    v_lshlrev_b32 v7, 4, v7
    v_and_b32 v56, 3, v2
    v_add3_u32 v7, v7, v56, s20
    v_lshlrev_b32 v4, 11, v7
    s_lshl_b32 s21, s16, 9
    v_lshl_add_u32 v4, v3, 4, v4
    v_add_u32 v4, s21, v4
    s_waitcnt lgkmcnt(0)''')
    srd(o, 8, 4, 4 * MB)
    srd(o, 12, 6, WS_USED)
    for it in range(4):
        o(f'buffer_load_dwordx4 v[{8+4*it}:{11+4*it}], v4, s[8:11], 0 offen offset:{128*it}')
    stamp(o, opt, 0, 0, 12, 16, tmpv=(64, 65, 66))
    o('''v_lshrrev_b32 v5, 2, v3
    v_lshlrev_b32 v5, 17, v5
    v_and_b32 v56, 3, v3
    v_lshl_add_u32 v5, v56, 8, v5
    v_lshl_add_u32 v5, v2, 4, v5
    s_lshl_b32 s21, s16, 20
    s_lshl_b32 s22, s17, 12
    s_add_u32 s21, s21, s22
    s_lshl_b32 s22, s18, 10
    s_add_u32 s21, s21, s22
    s_lshl_b32 s22, s19, 7
    s_add_u32 s21, s21, s22
    v_add_u32 v5, s21, v5
    s_mov_b32 s24, 0x40000
    s_mov_b32 s25, 0x80000
    s_mov_b32 s26, 0xc0000
    s_mov_b32 s27, 0x3f803f80
    s_mov_b32 s28, 0xffff0000
    v_lshlrev_b32 v6, 5, v2
    s_lshl_b32 s22, s16, 3
    v_add_u32 v7, s22, v6''')
    o(f'''s_lshl_b32 s22, s2, 8
    v_lshl_add_u32 v58, v1, 2, s22
    s_cmp_lg_u32 s16, 1
    s_cbranch_scc1 k0_noagg
    v_add_u32 v59, {WS_AGG}, v58
    v_mov_b32 v60, -1
    buffer_store_dword v60, v59, s[12:15], 0 offen
    k0_noagg:
    s_cmp_lg_u32 s16, 2
    s_cbranch_scc1 k0_noflag
    s_cmp_ge_u32 s2, 128
    s_cbranch_scc1 k0_noflag
    v_add_u32 v59, {WS_FLAG}, v58
    v_mov_b32 v60, 0
    buffer_store_dword v60, v59, s[12:15], 0 offen
    k0_noflag:
    v_mov_b32 v56, 0
    v_mov_b32 v57, 0
    v_mov_b32 v58, 0
    v_mov_b32 v59, 0
    s_waitcnt vmcnt(0)''')

    def sums(regs):
        for n, r in enumerate(regs):
            o(f'v_dot2_f32_bf16 v{56+2*(n&1)}, v{r}, s27, v{56+2*(n&1)}')
            o(f'v_dot2_f32_bf16 v{57+2*(n&1)}, v{r}, v{r}, v{57+2*(n&1)}')

    def reduce(ldsoff):
        o(f'''s_nop 2
        v_add_f32 v56, v56, v58
        v_add_f32 v57, v57, v59
        s_nop 1
        v_add_f32_dpp v56, v56, v56 row_ror:8 row_mask:0xf bank_mask:0xf
        v_add_f32_dpp v57, v57, v57 row_ror:8 row_mask:0xf bank_mask:0xf
        v_mov_b32 v58, v56
        v_mov_b32 v59, v57
        s_nop 1
        v_permlane16_swap_b32 v56, v58
        v_permlane16_swap_b32 v57, v59
        s_nop 1
        v_add_f32 v56, v56, v58
        v_add_f32 v57, v57, v59
        v_mov_b32 v58, v56
        v_mov_b32 v59, v57
        s_nop 1
        v_permlane32_swap_b32 v56, v58
        v_permlane32_swap_b32 v57, v59
        s_nop 1
        v_add_f32 v56, v56, v58
        v_add_f32 v57, v57, v59
        ds_write_b64 v7, v[56:57] offset:{ldsoff}
        s_waitcnt lgkmcnt(0)
        s_barrier
        ds_read_b128 v[56:59], v6 offset:{ldsoff}
        ds_read_b128 v[60:63], v6 offset:{ldsoff+16}
        s_waitcnt lgkmcnt(0)
        v_pk_add_f32 v[56:57], v[56:57], v[58:59]
        v_pk_add_f32 v[60:61], v[60:61], v[62:63]
        v_pk_add_f32 v[56:57], v[56:57], v[60:61]
        v_mul_f32 v56, {hexf(1/1024)}, v56
        v_mul_f32 v57, {hexf(1/1024)}, v57
        v_fma_f32 v57, -v56, v56, v57
        v_max_f32 v57, 0, v57''')
        bf16_round(o, 56)
        bf16_round(o, 57)
        o(f'v_add_f32 v57, {hexf(1e-5)}, v57')
        bf16_round(o, 57)
        o('v_sqrt_f32 v57, v57\ns_nop 0')
        bf16_round(o, 57)
        o('v_rcp_f32 v57, v57\ns_nop 0')

    sums(range(8, 24))
    reduce(0)
    for p in range(16):
        r, t = 8 + p, 24 + 2 * p
        o(f'v_lshlrev_b32 v{t}, 16, v{r}\nv_and_b32 v{t+1}, s28, v{r}')
    for p in range(16):
        t = 24 + 2 * p
        o(f'v_pk_add_f32 v[{t}:{t+1}], v[{t}:{t+1}], v[56:57] op_sel_hi:[1,0] neg_lo:[0,1] neg_hi:[0,1]')
    for p in range(16):
        r, t = 8 + p, 24 + 2 * p
        o(f'v_cvt_pk_bf16_f32 v{r}, v{t}, v{t+1}')
    for p in range(16):
        r, t = 8 + p, 24 + 2 * p
        o(f'v_lshlrev_b32 v{t}, 16, v{r}\nv_and_b32 v{t+1}, s28, v{r}')
    for p in range(16):
        t = 24 + 2 * p
        o(f'v_pk_mul_f32 v[{t}:{t+1}], v[{t}:{t+1}], v[56:57] op_sel:[0,1] op_sel_hi:[1,1]')
    for p in range(16):
        r, t = 8 + p, 24 + 2 * p
        o(f'v_cvt_pk_bf16_f32 v{r}, v{t}, v{t+1}')
        if p % 4 == 3:
            it = p // 4
            so = ['0', 's24', 's25', 's26'][it]
            o(f'buffer_store_dwordx4 v[{8+4*it}:{11+4*it}], v5, s[12:15], {so} offen')
    o('v_mov_b32 v56, 0\nv_mov_b32 v57, 0\nv_mov_b32 v58, 0\nv_mov_b32 v59, 0')
    sums(range(8, 24))
    reduce(256)
    o(f'''v_mul_f32 v56, v56, v57
    s_cmp_lg_u32 s16, 0
    s_cbranch_scc1 k0_fin
    s_lshl_b32 s21, s17, 9
    s_lshl_b32 s22, s19, 8
    s_add_u32 s21, s21, s22
    s_lshl_b32 s22, s18, 2
    s_add_u32 s21, s21, s22
    s_add_u32 s21, s21, {WS_STATS}
    v_add_u32 v6, s21, v6
    s_mov_b64 exec, 0xff
    buffer_store_dword v57, v6, s[12:15], 0 offen
    buffer_store_dword v56, v6, s[12:15], 0 offen offset:16
    s_mov_b64 exec, -1
    k0_fin:''')
    stamp(o, opt, 0, 1, 12, 16, tmpv=(64, 65, 66))
    o('k0_end:\ns_endpgm')
    return o.text(), descriptor(K0N, 72, sgpr=102 if opt.get('stamp') else 40), 512


K1_SLOT = 22528
K1_BIAS = 0
K1_CSUM = K1_BIAS + 1024
K1_AGGL = K1_CSUM + 1024
K1_CIN = K1_AGGL + 4096
K1_RING = K1_CIN + 4096
K1_TR = K1_RING + 4 * K1_SLOT
K1_LDS = K1_TR + 4 * 9216


def k1(opt):
    o = Out()
    ACS = lambda jt, i: 80 + (jt * 4 + i) * 4
    ACM = lambda a, i: 144 + (a * 4 + i) * 4
    XR = lambda t, i: (t % 4) * 16 + i * 4
    WB = lambda t, tile: 64 + (t % 2) * 44 + tile * 4
    vX, vB, vW, vS, vWr = 2, 3, 4, 8, 12
    sWv, sRb, sCb, sTg, sX, sB, sW, sM0S, sM0W, sM0H, sHalf, sCnt, sPar = 50, 51, 52, 53, 54, 55, 56, 57, 58, 59, 60, 62, 63
    o(kernel_head(K1N))
    o('''s_cmp_ge_u32 s2, 256
    s_cbranch_scc1 k1_end
    s_load_dwordx2 s[4:5], s[0:1], 8
    s_load_dwordx2 s[6:7], s[0:1], 16
    s_load_dwordx2 s[36:37], s[0:1], 24
    s_load_dwordx2 s[38:39], s[0:1], 32
    s_load_dwordx2 s[40:41], s[0:1], 56
    s_load_dwordx2 s[44:45], s[0:1], 80
    s_load_dwordx2 s[46:47], s[0:1], 88
    s_load_dwordx2 s[48:49], s[0:1], 128
    v_lshrrev_b32 v40, 6, v0
    v_and_b32 v1, 63, v0
    v_lshrrev_b32 v41, 4, v1
    v_and_b32 v42, 15, v1''')
    o(f'''v_readfirstlane_b32 s{sWv}, v40
    s_and_b32 s64, s2, 7
    s_lshr_b32 s65, s2, 3
    s_and_b32 s{sRb}, s64, 1
    s_lshl_b32 s{sRb}, s{sRb}, 2
    s_and_b32 s66, s65, 3
    s_add_u32 s{sRb}, s{sRb}, s66
    s_lshr_b32 s{sCb}, s64, 1
    s_lshl_b32 s{sCb}, s{sCb}, 3
    s_lshr_b32 s66, s65, 2
    s_add_u32 s{sCb}, s{sCb}, s66
    s_lshl_b32 s{sTg}, s{sRb}, 2
    s_add_u32 s{sTg}, s{sTg}, s{sWv}
    s_and_b32 s{sPar}, s{sCb}, 1
    s_lshl_b32 s66, s{sTg}, 12
    v_lshl_add_u32 v{vX}, v1, 4, s66''')
    o(f'''v_lshrrev_b32 v43, 3, v1
    s_lshl_b32 s66, s{sWv}, 3
    s_lshl_b32 s67, s{sCb}, 5
    s_add_u32 s67, s67, s66
    v_add_u32 v44, s67, v43
    v_lshlrev_b32 v44, 11, v44
    s_lshl_b32 s66, s{sWv}, 2
    v_add_u32 v45, s66, v41
    v_and_b32 v45, 7, v45
    v_and_b32 v46, 7, v1
    v_xor_b32 v45, v45, v46
    v_lshl_add_u32 v{vB}, v45, 4, v44''')
    o(f'''s_mul_i32 s67, s{sCb}, 224
    s_lshl_b32 s68, s{sPar}, 1
    s_movk_i32 s69, 4682
    s_movk_i32 s70, 7168''')
    for j in range(4):
        if j < 3:
            o(f's_mul_i32 s66, s{sWv}, 192\ns_add_u32 s66, s66, {64*j}')
        else:
            o(f's_lshr_b32 s66, s{sWv}, 1\ns_lshl_b32 s66, s66, 6\ns_add_u32 s66, s66, 768')
        o(f'''v_add_u32 v43, s66, v1
        v_mul_u32_u24 v44, s69, v43
        v_lshrrev_b32 v44, 16, v44
        v_mul_u32_u24 v45, 14, v44
        v_sub_u32 v45, v43, v45
        v_add_u32 v45, s68, v45
        v_subrev_u32 v46, 14, v45
        v_min_u32 v45, v45, v46
        v_lshrrev_b32 v46, 2, v44
        v_lshrrev_b32 v47, 3, v44
        v_xor_b32 v46, v46, v47
        v_and_b32 v46, 1, v46
        v_mul_u32_u24 v46, 12, v46
        v_xor_b32 v44, v44, v46
        v_mul_u32_u24 v44, s70, v44
        v_lshl_add_u32 v44, v45, 4, v44
        v_add_u32 v{vW+j}, s67, v44''')
    o(f'''s_lshl_b32 s{sM0S}, s{sWv}, 10
    s_mul_i32 s{sM0W}, s{sWv}, 3072
    s_add_u32 s{sM0W}, s{sM0W}, 8192
    s_lshr_b32 s{sM0H}, s{sWv}, 1
    s_lshl_b32 s{sM0H}, s{sM0H}, 10
    s_add_u32 s{sM0H}, s{sM0H}, {8192+12*1024}
    s_and_b32 s66, s{sWv}, 1
    s_cmp_eq_u32 s66, 0
    s_cselect_b32 s{sHalf}, -1, 0
    s_cselect_b32 s{sHalf+1}, 0, -1
    s_mov_b32 s{sX}, 0
    s_mov_b32 s{sB}, 0
    s_mov_b32 s{sW}, 0''')
    o(f'''s_lshl_b32 s66, s{sCb}, 6
    v_lshl_add_u32 v48, v42, 1, s66
    v_lshrrev_b32 v43, 4, v0
    v_add_u32 v43, s{sPar}, v43
    v_cmp_eq_u32 vcc, 7, v43
    v_and_b32 v44, 15, v0
    s_nop 0
    v_cndmask_b32 v43, v43, 0, vcc
    v_lshl_add_u32 v44, v43, 4, v44
    s_mul_i32 s66, s{sCb}, 112
    v_add_u32 v44, s66, v44
    v_lshlrev_b32 v44, 1, v44
    v_mov_b32 v45, 0x40000000
    v_cmp_gt_u32 vcc, 112, v0
    v_lshlrev_b32 v50, 5, v42
    s_lshl_b32 s66, s{sTg}, 9
    v_cndmask_b32 v49, v45, v44, vcc
    v_add_u32 v50, s66, v50
    s_waitcnt lgkmcnt(0)''')
    srd(o, 8, 48, 4 * MB, WS_XN)
    srd(o, 12, 36, 2 * MB)
    srd(o, 16, 38, 2 * MB)
    srd(o, 20, 44, 1024 * 3584 * 2)
    srd(o, 24, 48, A2_BYTES, WS_A2)
    srd(o, 28, 48, 65536, WS_AGG)
    srd(o, 32, 48, WS_USED)
    srd(o, 64, 4, 2048)
    srd(o, 68, 6, 2048)
    srd(o, 72, 40, 2048)
    srd(o, 76, 46, 7168)
    stamp(o, opt, 1, 0, 32, sWv, tmpv=(60, 61, 62))

    tr = Tracker()
    pro = []
    pro += [VM('buffer_load_ushort v52, v48, s[64:67], 0 offen', 'c'),
            VM('buffer_load_ushort v53, v48, s[64:67], 0 offen offset:32', 'c'),
            VM('buffer_load_ushort v54, v48, s[68:71], 0 offen', 'c'),
            VM('buffer_load_ushort v55, v48, s[68:71], 0 offen offset:32', 'c'),
            VM('buffer_load_ushort v56, v48, s[72:75], 0 offen', 'c'),
            VM('buffer_load_ushort v57, v48, s[72:75], 0 offen offset:32', 'c'),
            VM('buffer_load_ushort v58, v49, s[76:79], 0 offen', 'c'),
            f's_mov_b32 s80, {WS_STATS}',
            VM('buffer_load_dwordx4 v[32:35], v50, s[32:35], s80 offen', 'c'),
            VM('buffer_load_dwordx4 v[36:39], v50, s[32:35], s80 offen offset:16', 'c')]

    def dma(part, st):
        base = K1_RING + (st % 4) * K1_SLOT
        tag = ('D', st)
        if part == 1:
            return [[f's_add_u32 m0, s{sM0S}, {base}'], [VM(f'buffer_load_dwordx4 v{vB}, s[12:15], s{sB} offen lds', tag)],
                    [f's_add_u32 m0, s{sM0S}, {base+4096}'], [VM(f'buffer_load_dwordx4 v{vB}, s[16:19], s{sB} offen lds', tag)],
                    [f's_add_u32 m0, s{sM0W}, {base}', f's_add_u32 s{sB}, s{sB}, 128'],
                    [VM(f'buffer_load_dwordx4 v{vW}, s[20:23], s{sW} offen lds', tag)]]
        return [[f's_add_u32 m0, s{sM0W}, {base+1024}'], [VM(f'buffer_load_dwordx4 v{vW+1}, s[20:23], s{sW} offen lds', tag)],
                [f's_add_u32 m0, s{sM0W}, {base+2048}'], [VM(f'buffer_load_dwordx4 v{vW+2}, s[20:23], s{sW} offen lds', tag)],
                [f's_add_u32 m0, s{sM0H}, {base}'],
                [f's_mov_b64 exec, s[{sHalf}:{sHalf+1}]', VM(f'buffer_load_dwordx4 v{vW+3}, s[20:23], s{sW} offen lds', tag), 's_mov_b64 exec, -1',
                 f's_add_u32 s{sW}, s{sW}, {64*7168}']]

    def xloads(t):
        g = [[VM(f'buffer_load_dwordx4 {ar(XR(t, i), 4)}, v{vX}, s[8:11], s{sX} offen offset:{1024*i}', ('X', t))] for i in range(4)]
        g[3].append(f's_add_u32 s{sX}, s{sX}, 131072')
        return g

    def wreads(t):
        st, hs = t // 2, t % 2
        sl = st % 4
        so = (sl % 2) * K1_SLOT
        hi = sl // 2
        r = []
        for jt in range(4):
            r.append(DS(f'ds_read_b128 {ar(WB(t, jt), 4)}, v{vS+2*hi+hs} offset:{so+jt*2048}', ('R', t)))
        for a in range(7):
            for sec in range(2):
                r.append(DS(f'ds_read_b64_tr_b16 {ar(WB(t, 4+a)+2*sec, 2)}, v{vWr+hi} offset:{so+hs*7168+sec*1792+a*32}', ('R', t)))
        return r

    def flat(groups):
        out = []
        for g in groups:
            out += g
            if len(g) and isinstance(g[0], str) and 'm0' in g[0] and len(g) == 1:
                out.append('s_nop 0')
        return out

    pro += flat(dma(1, 0)) + flat(dma(2, 0)) + flat(xloads(0)) + flat(dma(1, 1)) + flat(dma(2, 1)) + flat(xloads(1)) + flat(dma(1, 2)) + flat(xloads(2))
    pro += [f'''v_lshrrev_b32 v43, 1, v42
    v_xor_b32 v44, v43, v41
    v_lshlrev_b32 v44, 4, v44
    v_lshl_add_u32 v44, v42, 7, v44
    v_xor_b32 v45, 64, v44
    v_add_u32 v{vS}, {K1_RING}, v44
    v_add_u32 v{vS+1}, {K1_RING}, v45
    v_add_u32 v{vS+2}, {K1_RING+2*K1_SLOT}, v44
    v_add_u32 v{vS+3}, {K1_RING+2*K1_SLOT}, v45
    v_lshrrev_b32 v43, 1, v41
    v_lshlrev_b32 v43, 4, v43
    v_and_b32 v44, 1, v41
    v_lshl_add_u32 v43, v44, 2, v43
    v_lshrrev_b32 v44, 2, v42
    v_add_u32 v43, v43, v44
    v_mul_u32_u24 v43, 224, v43
    v_and_b32 v44, 3, v42
    v_lshl_add_u32 v43, v44, 3, v43
    v_add_u32 v{vWr}, {K1_RING+8192}, v43
    v_add_u32 v{vWr+1}, {K1_RING+8192+2*K1_SLOT}, v43''']
    pro += [f'v_mov_b32 v{r}, 0' for r in range(80, 256)]
    pro += [Wait('c', vm=['c'])]
    cst = []
    for c in range(2):
        lre, lim, ldt = 52 + c, 54 + c, 56 + c
        lr, li, nli, cf = 14 + 3 * c, 15 + 3 * c, 16 + 3 * c, 20 + 2 * c
        cst.append(f'''v_lshlrev_b32 v{lre}, 16, v{lre}
        v_lshlrev_b32 v{lim}, 16, v{lim}
        v_lshlrev_b32 v{ldt}, 16, v{ldt}
        v_mul_f32 v{ldt}, {hexf(LOG2E)}, v{ldt}
        v_exp_f32 v{ldt}, v{ldt}
        s_nop 0
        v_cvt_pk_bf16_f32 v{ldt}, v{ldt}, v{ldt}
        v_lshlrev_b32 v{ldt}, 16, v{ldt}
        v_mul_f32 v60, v{ldt}, v{lre}
        v_mul_f32 v61, v{ldt}, v{lim}
        v_mul_f32 v60, {hexf(LOG2E)}, v60
        v_mul_f32 v61, 0.15915494, v61
        v_exp_f32 v60, v60
        v_fract_f32 v61, v61
        v_cos_f32 v62, v61
        v_sin_f32 v63, v61
        s_nop 0
        v_mul_f32 v{lr}, v60, v62
        v_mul_f32 v{li}, v60, v63
        v_sub_f32 v{nli}, 0, v{li}
        v_add_f32 v60, -1.0, v{lr}
        v_mul_f32 v61, v{lre}, v{lre}
        v_fmac_f32 v61, v{lim}, v{lim}
        v_rcp_f32 v61, v61
        v_mul_f32 v62, v60, v{lre}
        v_fmac_f32 v62, v{li}, v{lim}
        v_mul_f32 v63, v{li}, v{lre}
        v_fma_f32 v63, -v60, v{lim}, v63
        v_add_f32 v61, v61, v61
        v_mul_f32 v{cf}, v62, v61
        v_mul_f32 v{cf+1}, v63, v61''')
    cst.append('''v_and_b32 v43, 1, v41
    v_cmp_eq_u32 vcc, 1, v43
    s_nop 1
    v_cndmask_b32 v24, v14, v17, vcc
    v_cndmask_b32 v25, v15, v18, vcc''')

    def square(re, im):
        return f'''v_mul_f32 v60, v{im}, v{im}
        v_mul_f32 v{im}, v{re}, v{im}
        v_fma_f32 v{re}, v{re}, v{re}, -v60
        v_add_f32 v{im}, v{im}, v{im}'''
    cst += [square(24, 25) for _ in range(4)]
    cst.append('v_mov_b32 v28, v24\nv_mov_b32 v29, v25\nv_sub_f32 v26, 0, v25')
    cst += [square(28, 29) for _ in range(4)]
    cst.append('v_sub_f32 v27, 0, v29')
    cst.append(f'''v_lshlrev_b32 v58, 16, v58
    v_lshlrev_b32 v43, 2, v0''')
    cst.append(DS(f'ds_write_b32 v43, v58 offset:{K1_BIAS}', 'b'))
    pro += cst
    pro += [Wait('p0', vm=[('D', 0)], lg='all'), 's_barrier']
    pro += wreads(0)

    def step(t, nst):
        st, hs = t // 2, t % 2
        mf = []
        for jt in range(4):
            for i in range(4):
                mf.append(f'v_mfma_f32_16x16x32_bf16 {vr(ACS(jt, i), 4)}, {ar(XR(t, i), 4)}, {ar(WB(t, jt), 4)}, {vr(ACS(jt, i), 4)}')
        for a in range(7):
            for i in range(4):
                mf.append(f'v_mfma_f32_16x16x32_bf16 {vr(ACM(a, i), 4)}, {ar(WB(t, 4+a), 4)}, {ar(XR(t, i), 4)}, {vr(ACM(a, i), 4)}')
        f = {}
        place(f, -1, Wait(('s', t % 8), vm=[('X', t)], lg='all'))
        rd = wreads(t + 1)
        vmg = (dma(2, st + 2) if hs == 0 else dma(1, st + 3))
        xg = xloads(t + 3)
        ds_gaps = opt.get('k1_ds_gaps', [0, 1, 3, 4, 6, 7, 9, 10, 12, 13, 15, 16, 18, 19, 21, 22, 24, 25])
        for g, r in zip(ds_gaps, rd):
            place(f, g, r)
        vm_gaps = opt.get('k1_vm_gaps', [2, 5, 8, 11, 14, 17, 20, 23, 26, 28])
        groups = [xg[0], vmg[0], vmg[1], xg[1], vmg[2], vmg[3], xg[2], vmg[4], vmg[5], xg[3]]
        for g, grp in zip(vm_gaps, groups):
            place(f, g, *grp)
        if hs == 0:
            place(f, 43, Wait(('b', t % 8), vm=[('D', st + 1)]), 's_barrier')
        return interleave(mf, f)

    body = [step(t, 16) for t in range(32)]
    tr.run(pro)
    for b in body:
        tr.run(b)
    o.items(tr, pro)
    o(f's_mov_b32 s{sCnt}, 4')
    o('k1_loop:')
    for t in range(8, 16):
        o.items(tr, body[t])
    o(f'''s_sub_u32 s{sCnt}, s{sCnt}, 1
    s_cmp_lg_u32 s{sCnt}, 0
    s_cbranch_scc1 k1_loop''')
    stamp(o, opt, 1, 1, 32, sWv, tmpv=(60, 61, 62))
    o(f'''s_mov_b32 s64, {hexf(-2*LOG2E*math.sqrt(2/math.pi))}
    s_mov_b32 s65, {hexf(-2*LOG2E*math.sqrt(2/math.pi)*0.044715)}
    v_lshrrev_b32 v41, 4, v1
    v_and_b32 v42, 15, v1
    s_lshl_b32 s66, s{sWv}, 10
    v_lshlrev_b32 v3, 8, v41
    v_lshl_add_u32 v3, v42, 3, v3
    v_add_u32 v3, s66, v3
    v_and_b32 v4, 31, v1
    v_lshlrev_b32 v4, 3, v4
    v_lshlrev_b32 v5, 4, v41
    s_nop 7''')
    for c in range(2):
        cf = vr(20 + 2 * c, 2)
        for i in range(4):
            for rp in (0, 2):
                re, im = vr(ACS(c, i) + rp, 2), vr(ACS(2 + c, i) + rp, 2)
                t = vr(44 + 2 * ((i * 2 + rp // 2) % 2), 2)
                o(f'''v_pk_mul_f32 {t}, {re}, {cf} op_sel:[0,1] op_sel_hi:[1,1]
                v_pk_mul_f32 {re}, {re}, {cf} op_sel_hi:[1,0]
                v_pk_fma_f32 {re}, {im}, {cf}, {re} op_sel:[0,1,0] op_sel_hi:[1,1,1] neg_lo:[0,1,0] neg_hi:[0,1,0]
                v_pk_fma_f32 {im}, {im}, {cf}, {t} op_sel_hi:[1,0,1]''')
    U = lambda jt, n: ACS(jt, n // 4) + n % 4
    prev = [(U(0, 0), U(2, 0)), (U(1, 0), U(3, 0))]
    for n in range(1, 16):
        cur = [(44 + 2 * (n % 2), 45 + 2 * (n % 2)), (48 + 2 * (n % 2), 49 + 2 * (n % 2))]
        for c in range(2):
            o(f'v_fma_f32 v{cur[c][0]}, v{14+3*c}, v{prev[c][0]}, v{U(c, n)}')
            o(f'v_fma_f32 v{cur[c][1]}, v{14+3*c}, v{prev[c][1]}, v{U(2+c, n)}')
        for c in range(2):
            o(f'v_fmac_f32 v{cur[c][0]}, v{16+3*c}, v{prev[c][1]}')
            o(f'v_fmac_f32 v{cur[c][1]}, v{15+3*c}, v{prev[c][0]}')
        prev = cur
    o(f'''ds_write_b64 v3, {vr(prev[0][0], 2)} offset:{K1_AGGL}
    ds_write_b64 v3, {vr(prev[1][0], 2)} offset:{K1_AGGL+128}
    ds_read_b128 v[6:9], v5 offset:{K1_BIAS}
    s_waitcnt lgkmcnt(0)
    s_barrier
    s_cmp_lg_u32 s{sWv}, 0
    s_cbranch_scc1 k1_nopub''')

    def horner16(init, store):
        for s in range(16):
            o(f'ds_read_b64 {vr(44+2*s, 2)}, v4 offset:{K1_AGGL+256*s}')
        o('s_waitcnt lgkmcnt(0)')
        prev = init
        for s in range(16):
            a = 44 + 2 * s
            if store:
                o(f'ds_write_b64 v4, {vr(prev, 2)} offset:{K1_CIN+256*s}')
                if s == 15:
                    break
            if prev is not None:
                o(f'''v_fmac_f32 v{a}, v24, v{prev}
                v_fmac_f32 v{a+1}, v24, v{prev+1}
                v_fmac_f32 v{a}, v26, v{prev+1}
                v_fmac_f32 v{a+1}, v25, v{prev}''')
            prev = a
        return prev
    last = horner16(None, False)
    o(f'''s_lshl_b32 s66, s{sCb}, 3
    s_add_u32 s66, s66, s{sRb}
    s_lshl_b32 s66, s66, 8
    v_mov_b32 v10, 0x7fc00000
    v_cmp_eq_u32 vcc, -1, v{last}
    v_cmp_eq_u32 s[68:69], -1, v{last+1}
    s_nop 1
    v_cndmask_b32 v{last}, v{last}, v10, vcc
    v_cndmask_b32 v{last+1}, v{last+1}, v10, s[68:69]
    s_mov_b32 exec_hi, 0
    buffer_store_dwordx2 {vr(last, 2)}, v4, s[28:31], s66 offen sc1
    s_mov_b32 exec_hi, -1
    k1_nopub:''')
    o(f'''s_mul_i32 s70, s{sCb}, 7
    s_add_u32 s70, s70, s{sPar}
    s_lshr_b32 s70, s70, 1
    s_add_u32 s71, s70, 67
    s_add_u32 s72, s70, 63
    s_cmp_eq_u32 s{sPar}, 0
    s_cselect_b32 s71, s71, s72
    s_lshl_b32 s71, s71, 17
    s_add_u32 s70, s70, 64
    s_lshl_b32 s70, s70, 17
    s_lshl_b32 s72, s{sPar}, 3
    v_add_u32 v13, s72, v{vX}''')
    kk = 's[64:65]'
    for a in range(7):
        bias = 6 if a % 2 == 0 else 52
        nb = 52 if a % 2 == 0 else 6
        if a > 0:
            o('s_waitcnt lgkmcnt(0)')
        if a < 6:
            o(f'ds_read_b128 {vr(nb, 4)}, v5 offset:{K1_BIAS+64*(a+1)}')
        for ih in range(2):
            prs = [(i, rp) for i in (2 * ih, 2 * ih + 1) for rp in (0, 2)]
            X = [vr(ACM(a, i) + rp, 2) for i, rp in prs]
            T = [44 + 2 * n for n in range(4)]
            for n, (i, rp) in enumerate(prs):
                sel = 'op_sel:[0,1,0] op_sel_hi:[1,1,1]' if i % 2 else 'op_sel_hi:[1,0,1]'
                o(f'v_pk_fma_f32 {X[n]}, {X[n]}, {vr(32+(i//2)*2, 2)}, {vr(bias+rp, 2)} {sel}')
            for n in range(4):
                o(f'v_pk_mul_f32 {vr(T[n], 2)}, {X[n]}, {X[n]}')
            for n in range(4):
                o(f'v_pk_fma_f32 {vr(T[n], 2)}, {vr(T[n], 2)}, {kk}, {kk} op_sel:[0,1,0] op_sel_hi:[1,1,0]')
            for n in range(4):
                o(f'v_pk_mul_f32 {vr(T[n], 2)}, {vr(T[n], 2)}, {X[n]}')
            for n in range(8):
                o(f'v_exp_f32 v{44+n}, v{44+n}')
            for n in range(4):
                o(f'v_pk_add_f32 {vr(T[n], 2)}, {vr(T[n], 2)}, 1.0 op_sel_hi:[1,0]')
            for n in range(8):
                o(f'v_rcp_f32 v{44+n}, v{44+n}')
            for n in range(4):
                o(f'v_pk_mul_f32 {X[n]}, {X[n]}, {vr(T[n], 2)}')
            for i in (2 * ih, 2 * ih + 1):
                src = ACM(a, i)
                if a == 6:
                    dst = src
                elif a % 2 == 0:
                    dst = src
                else:
                    dst = ACM(a - 1, i) + 2
                o(f'v_cvt_pk_bf16_f32 v{dst}, v{src}, v{src+1}')
                o(f'v_cvt_pk_bf16_f32 v{dst+1}, v{src+2}, v{src+3}')
            for i in (2 * ih, 2 * ih + 1):
                if a == 6:
                    o(f'buffer_store_dwordx2 {vr(ACM(a, i), 2)}, v13, s[24:27], s71 offen offset:{1024*i}')
                elif a % 2 == 1:
                    o(f'buffer_store_dwordx4 {vr(ACM(a-1, i), 4)}, v{vX}, s[24:27], s70 offen offset:{1024*i}')
        if a % 2 == 1:
            o('s_add_u32 s70, s70, 131072')
    stamp(o, opt, 1, 2, 32, sWv, tmpv=(60, 61, 62))
    o(f'''s_cmp_lg_u32 s{sWv}, 0
    s_cbranch_scc1 k1_nocarry
    s_lshl_b32 s66, s{sCb}, 3
    s_add_u32 s66, s66, s{sRb}''')
    for j in range(1, 8):
        o(f'''s_sub_u32 s67, s66, {j}
        s_lshl_b32 s67, s67, 8
        s_cmp_ge_u32 s{sRb}, {j}
        s_cselect_b32 s{80+j}, s67, 0x20000''')
    o('s_mov_b32 s73, 0x100000\nk1_poll:')
    for j in range(1, 8):
        o(f'buffer_load_dwordx2 {vr(144+2*j, 2)}, v4, s[28:31], s{80+j} offen sc1')
    o('s_waitcnt vmcnt(0)')
    o('v_cmp_eq_u32 s[68:69], -1, v146')
    for r in range(147, 160):
        o(f'''v_cmp_eq_u32 vcc, -1, v{r}
        s_or_b64 s[68:69], s[68:69], vcc''')
    o('''s_sub_u32 s73, s73, 1
    s_cselect_b64 s[68:69], 0, s[68:69]
    s_cmp_lg_u64 s[68:69], 0
    s_cbranch_scc1 k1_poll''')
    prev = 144 + 14
    for j in range(6, 0, -1):
        a = 144 + 2 * j
        o(f'''v_fmac_f32 v{a}, v28, v{prev}
        v_fmac_f32 v{a+1}, v28, v{prev+1}
        v_fmac_f32 v{a}, v27, v{prev+1}
        v_fmac_f32 v{a+1}, v29, v{prev}''')
        prev = a
    horner16(prev, True)
    o(f'''s_waitcnt lgkmcnt(0)
    k1_nocarry:
    s_barrier
    ds_read_b64 v[44:45], v3 offset:{K1_CIN}
    ds_read_b64 v[46:47], v3 offset:{K1_CIN+128}
    s_mul_i32 s66, s{sWv}, 9216
    s_add_u32 s66, s66, {K1_TR}
    v_mul_u32_u24 v6, 144, v42
    v_lshl_add_u32 v6, v41, 5, v6
    v_add_u32 v6, s66, v6
    v_lshrrev_b32 v7, 2, v42
    v_lshl_add_u32 v7, v41, 3, v7
    v_mul_u32_u24 v7, 144, v7
    v_and_b32 v8, 3, v42
    v_lshl_add_u32 v7, v8, 5, v7
    v_add_u32 v7, s66, v7
    s_lshl_b32 s70, s{sCb}, 17
    s_add_u32 s71, s70, {32*131072}
    s_waitcnt lgkmcnt(0)''')
    prev = [(44, 45), (46, 47)]
    for n in range(16):
        cur = [(U(0, n), U(2, n)), (U(1, n), U(3, n))]
        for c in range(2):
            o(f'v_fmac_f32 v{cur[c][0]}, v{14+3*c}, v{prev[c][0]}')
            o(f'v_fmac_f32 v{cur[c][1]}, v{14+3*c}, v{prev[c][1]}')
        for c in range(2):
            o(f'v_fmac_f32 v{cur[c][0]}, v{16+3*c}, v{prev[c][1]}')
            o(f'v_fmac_f32 v{cur[c][1]}, v{15+3*c}, v{prev[c][0]}')
        prev = cur
    for jt in range(4):
        ng = '-' if jt >= 2 else ''
        for h in range(2):
            d = ACS(jt, 2 * h)
            for k in range(4):
                s = ACS(jt, 2 * h + k // 2) + 2 * (k % 2)
                o(f'v_cvt_pk_bf16_f32 v{d+k}, {ng}v{s}, {ng}v{s+1}')
            o(f'ds_write_b128 v6, {vr(d, 4)} offset:{jt*16*144+16*h}')
    o('s_waitcnt lgkmcnt(0)')
    for grp in range(2):
        for i in range(4):
            d = 144 + (grp * 4 + i) * 4
            for sec in range(2):
                o(f'ds_read_b64_tr_b16 {vr(d+2*sec, 2)}, v7 offset:{grp*4608+sec*576+i*8}')
    for grp in range(2):
        for i in range(4):
            d = 144 + (grp * 4 + i) * 4
            o(f's_waitcnt lgkmcnt({14-2*(grp*4+i)})')
            o(f'buffer_store_dwordx4 {vr(d, 4)}, v{vX}, s[24:27], s{70+grp} offen offset:{1024*i}')
    stamp(o, opt, 1, 3, 32, sWv, tmpv=(60, 61, 62))
    o('k1_end:\ns_endpgm')
    return o.text(), descriptor(K1N, 256, 152), K1_LDS


F1 = 896


def k2(opt):
    o = Out()
    ACG = lambda j, i: 176 + (j * 2 + i) * 4
    ACS = lambda j, i: (j * 2 + i) * 4
    WB = lambda t, j: 64 + (t % 2) * 32 + j * 4
    XR = lambda t, i: 128 + (t % 8) * 8 + i * 4
    vA, vC, vW, vS, vT = 2, 4, 8, 12, 16
    vXs, vXN, vD, vP = 32, 64, 96, 112
    sWv, sRole, sRb, sCb, sA, sC, sW, sM0, sCnt, sTile = 50, 51, 52, 53, 54, 55, 56, 57, 58, 59
    G0 = 64 + F1 // 32
    o(kernel_head(K2N))
    o('''s_cmp_ge_u32 s2, 256
    s_cbranch_scc1 k2_end
    s_load_dwordx2 s[4:5], s[0:1], 0
    s_load_dwordx2 s[6:7], s[0:1], 40
    s_load_dwordx2 s[60:61], s[0:1], 48
    s_load_dwordx2 s[62:63], s[0:1], 64
    s_load_dwordx2 s[64:65], s[0:1], 96
    s_load_dwordx2 s[66:67], s[0:1], 104
    s_load_dwordx2 s[68:69], s[0:1], 112
    s_load_dwordx2 s[70:71], s[0:1], 128
    v_lshrrev_b32 v24, 6, v0
    v_and_b32 v1, 63, v0
    v_lshrrev_b32 v25, 4, v1
    v_and_b32 v26, 15, v1''')
    o(f'''v_readfirstlane_b32 s{sWv}, v24
    s_and_b32 s72, s2, 7
    s_lshr_b32 s73, s2, 3
    s_and_b32 s{sRole}, s72, 1
    s_lshr_b32 s{sRb}, s72, 1
    s_lshl_b32 s{sRb}, s{sRb}, 2
    s_and_b32 s74, s73, 3
    s_add_u32 s{sRb}, s{sRb}, s74
    s_lshr_b32 s{sCb}, s73, 2
    s_lshl_b32 s{sTile}, s{sRb}, 3
    s_add_u32 s{sTile}, s{sTile}, s{sCb}
    s_lshl_b32 s{sTile}, s{sTile}, 2
    s_add_u32 s{sTile}, s{sTile}, s{sWv}
    s_lshl_b32 s74, s{sRb}, 13
    s_lshl_b32 s75, s{sWv}, 11
    s_add_u32 s74, s74, s75
    v_lshl_add_u32 v{vA}, v1, 4, s74
    s_lshl_b32 s{sM0}, s{sWv}, 12
    v_lshrrev_b32 v27, 3, v1
    s_lshl_b32 s74, s{sCb}, 7
    s_lshl_b32 s75, s{sWv}, 5
    s_add_u32 s74, s74, s75
    v_add_u32 v27, s74, v27
    v_lshlrev_b32 v27, 11, v27
    v_and_b32 v28, 7, v1
    v_xor_b32 v28, v28, v25
    v_lshl_add_u32 v{vC}, v28, 4, v27
    v_xor_b32 v{vC+1}, 64, v{vC}
    v_add_u32 v{vC+1}, 0x4000, v{vC+1}
    v_add_u32 v{vC+2}, 0x8000, v{vC}
    v_add_u32 v{vC+3}, 0x8000, v{vC+1}
    s_lshl_b32 s74, s{sWv}, 4
    v_add_u32 v27, s74, v25
    v_lshlrev_b32 v27, 11, v27
    s_lshl_b32 s74, s{sCb}, 8
    v_add_u32 v27, s74, v27
    v_lshrrev_b32 v28, 1, v26
    v_xor_b32 v28, v28, v25
    v_lshl_add_u32 v27, v28, 5, v27
    v_and_b32 v28, 1, v26
    v_lshl_add_u32 v{vW}, v28, 4, v27
    v_xor_b32 v{vW+1}, 128, v{vW}
    v_add_u32 v{vW+1}, 0x2000, v{vW+1}
    v_add_u32 v{vW+2}, 0x4000, v{vW}
    v_add_u32 v{vW+3}, 0x4000, v{vW+1}
    s_cmp_eq_u32 s{sRole}, 0
    s_cselect_b32 s{sA}, 0, {G0*131072}
    s_cselect_b32 s{sW}, 0, {F1*2048}
    s_mov_b32 s74, {G0*131072}
    s_cselect_b32 s74, s74, {A2_BYTES}
    s_mov_b32 s75, {F1*2048}
    s_cselect_b32 s75, s75, {3584*2048}
    s_mov_b32 s{sC}, 0
    s_lshl_b32 s76, s{sCb}, 8
    v_lshl_add_u32 v3, v25, 3, s76
    s_waitcnt lgkmcnt(0)''')
    srd(o, 8, 70, 's74', WS_A2)
    srd(o, 12, 6, 2 * MB)
    srd(o, 16, 64, 's75')
    srd(o, 20, 70, 4 * MB, WS_XN)
    srd(o, 24, 4, 4 * MB)
    srd(o, 28, 68, 8 * MB)
    srd(o, 32, 70, 8 * MB, WS_PART)
    srd(o, 36, 70, WS_USED)
    srd(o, 40, 62, 2048)
    srd(o, 44, 66, 2048)
    stamp(o, opt, 2, 0, 36, sWv, tmpv=(244, 245, 246))

    def dma(kind, part, st):
        base = (st % 4) * 16384
        tag = ('D', st)
        g = []
        for jj in ((0, 1) if part == 1 else (2, 3)):
            g.append([f's_add_u32 m0, s{sM0}, {base+1024*jj}'])
            if kind == 'C':
                g.append([VM(f'buffer_load_dwordx4 v{vC+jj}, s[12:15], s{sC} offen lds', tag)])
            else:
                g.append([VM(f'buffer_load_dwordx4 v{vW+jj}, s[16:19], s{sW} offen lds', tag)])
        if part == 2:
            g[3].append(f's_add_u32 s{sC}, s{sC}, 128' if kind == 'C' else f's_add_u32 s{sW}, s{sW}, 131072')
        return g

    def aloads(t):
        g = [[VM(f'buffer_load_dwordx4 {ar(XR(t, i), 4)}, v{vA}, s[8:11], s{sA} offen offset:{1024*i}', ('X', t))] for i in range(2)]
        g[1].append(f's_add_u32 s{sA}, s{sA}, 131072')
        return g

    def wreads(kind, t):
        st, hs = t // 2, t % 2
        so = (st % 4) * 16384
        r = []
        for j in range(8):
            if kind == 'C':
                r.append([DS(f'ds_read_b128 {ar(WB(t, j), 4)}, v{vS+hs} offset:{so+j*2048}', ('R', t))])
            else:
                r.append([DS(f'ds_read_b64_tr_b16 {ar(WB(t, j)+2*sec, 2)}, v{vT+j} offset:{so+hs*8192+sec*4096}', ('R', t)) for sec in range(2)])
        return r

    def flat(groups):
        out = []
        for g in groups:
            out += g
            if len(g) == 1 and isinstance(g[0], str) and 'm0' in g[0]:
                out.append('s_nop 0')
        return out

    def step(t, kind_of, key, extra=None):
        st, hs = t // 2, t % 2
        kind = kind_of(st)
        mf = []
        for j in range(8):
            for i in range(2):
                acc = ar(ACS(j, i), 4) if kind == 'C' else vr(ACG(j, i), 4)
                mf.append(f'v_mfma_f32_16x16x32_bf16 {acc}, {ar(WB(t, j), 4)}, {ar(XR(t, i), 4)}, {acc}')
        f = {}
        place(f, -1, Wait((key, 's', t % 8), vm=[('X', t)], lg='all'))
        rd = wreads(kind_of((t + 1) // 2), t + 1)
        for j, r in enumerate(rd):
            place(f, j + (j // 2), *r)
        tgt = st + 2 if hs == 0 else st + 3
        vmg = dma(kind_of(tgt), 2 if hs == 0 else 1, tgt)
        xg = aloads(t + 7)
        for g, grp in zip([2, 5, 8, 11, 12, 13], [xg[0], vmg[0], vmg[1], xg[1], vmg[2], vmg[3]]):
            place(f, g, *grp)
        if extra:
            for g, its in extra.items():
                place(f, g, *its)
        if hs == 0:
            place(f, 15, Wait((key, 'b', t % 8), vm=[('D', st + 1)]), 's_barrier')
        return interleave(mf, f)

    ldsbase = [f'''v_lshrrev_b32 v27, 1, v26
    v_xor_b32 v28, v27, v25
    v_lshlrev_b32 v28, 4, v28
    v_lshl_add_u32 v{vS}, v26, 7, v28
    v_xor_b32 v{vS+1}, 64, v{vS}
    v_lshrrev_b32 v27, 2, v26
    v_lshl_add_u32 v27, v25, 2, v27
    v_and_b32 v28, 3, v26
    v_lshlrev_b32 v28, 3, v28
    v_lshl_add_u32 v28, v27, 8, v28
    v_and_b32 v27, 7, v27''']
    for j in range(8):
        ldsbase.append(f'''v_xor_b32 v29, {j}, v27
        v_lshl_add_u32 v{vT+j}, v29, 5, v28''')

    def prologue(kind, key, first):
        p = list(first)
        p += flat(dma(kind, 1, 0)) + flat(dma(kind, 2, 0)) + flat(aloads(0)) + flat(aloads(1))
        p += flat(dma(kind, 1, 1)) + flat(dma(kind, 2, 1)) + flat(aloads(2)) + flat(aloads(3))
        p += flat(dma(kind, 1, 2)) + flat(aloads(4)) + flat(aloads(5)) + flat(aloads(6))
        return p

    NS0, NG0, NG1 = 32, F1 // 64, (3584 - F1) // 64
    assert NG0 % 4 == 2 and NG1 % 4 == 2
    kind0 = lambda st: 'C' if st < NS0 else 'W'
    kind1 = lambda st: 'W'
    p0 = prologue('C', 'p0', [])
    p0 += ldsbase
    p0 += [f'v_accvgpr_write_b32 a{r}, 0' for r in range(64)]
    p0 += [f'v_mov_b32 v{r}, 0' for r in range(176, 240)]
    p0 += [Wait('p0', vm=[('D', 0)]), 's_barrier'] + [x for g in wreads('C', 0) for x in g]
    sw = [f's_cmp_eq_u32 s{sC}, 2048', 's_cselect_b32 s12, s60, s12', 's_cselect_b32 s13, s61, s13', f's_cselect_b32 s{sC}, 0, s{sC}']
    ex = []
    for j in range(8):
        ex.append(VM(f'buffer_load_dwordx2 {vr(vD+2*j, 2)}, v3, s[40:43], 0 offen offset:{32*j}', 'E'))
    for i in range(2):
        for j in range(8):
            ex.append(VM(f'buffer_load_dwordx2 {vr(vXN+(j*2+i)*2, 2)}, v30, s[20:23], {["0", "s80", "s81", "s82"][j//2]} offen offset:{1024*i+512*(j&1)}', 'E'))
    for i in range(2):
        for j in range(8):
            ex.append(VM(f'buffer_load_dwordx2 {vr(vXs+(j*2+i)*2, 2)}, v31, s[24:27], {["0", "s83"][i]} offen offset:{32*j}', 'E'))
    body0 = []
    for t in range(2 * (NS0 + NG0)):
        st = t // 2
        extra = {}
        key = 'S'
        if st < 28:
            if t % 8 == 2:
                extra[14] = sw
        elif st < 32:
            key = 'T'
            n = t - 56
            extra[14] = ex[5 * n:5 * n + 5]
        else:
            key = 'G'
        body0.append(step(t, kind0, key, extra))
    first = [VM(f'buffer_load_dwordx2 {vr(vD+2*j, 2)}, v3, s[44:47], 0 offen offset:{32*j}', 'c') for j in range(8)]
    p1 = prologue('W', 'p1', first) + ldsbase + [Wait('p1c', vm=['c'])]
    for j in range(8):
        for i in range(2):
            a = ACG(j, i)
            p1.append(f'''v_lshlrev_b32 v{a}, 16, v{vD+2*j}
            v_and_b32 v{a+1}, 0xffff0000, v{vD+2*j}
            v_lshlrev_b32 v{a+2}, 16, v{vD+2*j+1}
            v_and_b32 v{a+3}, 0xffff0000, v{vD+2*j+1}''')
    p1 += [Wait('p1', vm=[('D', 0)]), 's_barrier'] + [x for g in wreads('W', 0) for x in g]
    body1 = [step(t, kind1, 'G') for t in range(2 * NG1)]
    tr = Tracker()
    tr.run(p0)
    for b in body0:
        tr.run(b)
    tr.run([Wait('e0', vm=['E'])])
    tr1 = Tracker()
    tr1.res = tr.res
    tr1.run(p1)
    for b in body1:
        tr1.run(b)

    o(f'''s_cmp_lg_u32 s{sRole}, 0
    s_cbranch_scc1 k2_role1''')
    o(f'''s_lshr_b32 s72, s{sWv}, 1
    s_lshl_b32 s73, s{sRb}, 1
    s_add_u32 s72, s72, s73
    s_and_b32 s73, s{sWv}, 1
    s_lshl_b32 s74, s72, 12
    s_lshl_b32 s75, s73, 11
    s_add_u32 s74, s74, s75
    s_lshl_b32 s75, s{sCb}, 19
    s_add_u32 s74, s74, s75
    v_lshrrev_b32 v27, 1, v25
    v_lshl_add_u32 v27, v27, 4, v26
    v_lshlrev_b32 v27, 4, v27
    v_and_b32 v28, 1, v25
    v_lshl_add_u32 v27, v28, 3, v27
    v_add_u32 v30, s74, v27
    s_lshl_b32 s74, s72, 6
    s_lshl_b32 s75, s73, 3
    s_add_u32 s74, s74, s75
    v_lshrrev_b32 v27, 2, v26
    v_lshlrev_b32 v27, 4, v27
    v_and_b32 v28, 3, v26
    v_add3_u32 v27, v27, v28, s74
    v_lshl_add_u32 v31, v27, 11, v3
    s_mov_b32 s80, 0x20000
    s_mov_b32 s81, 0x40000
    s_mov_b32 s82, 0x60000
    s_mov_b32 s83, 0x2000''')
    o.items(tr, p0)
    o(f's_mov_b32 s{sCnt}, 7\nk2_sloop:')
    for t in range(8, 16):
        o.items(tr, body0[t])
    o(f'''s_sub_u32 s{sCnt}, s{sCnt}, 1
    s_cmp_lg_u32 s{sCnt}, 0
    s_cbranch_scc1 k2_sloop''')
    for t in range(56, 64):
        o.items(tr, body0[t])
    o(f's_mov_b32 s{sCnt}, {NG0//4+1}\ns_branch k2_gloop')
    o('k2_role1:')
    o.items(tr1, p1)
    o(f's_mov_b32 s{sCnt}, {NG1//4+1}')
    o('k2_gloop:')
    for t in range(8, 12):
        o.items(tr, body1[t])
    o(f'''s_sub_u32 s{sCnt}, s{sCnt}, 1
    s_cmp_eq_u32 s{sCnt}, 0
    s_cbranch_scc1 k2_gdone''')
    for t in range(12, 16):
        o.items(tr, body1[t])
    o('s_branch k2_gloop\nk2_gdone:')
    stamp(o, opt, 2, 1, 36, sWv, tmpv=(244, 245, 246))
    o(f'''s_lshl_b32 s72, s{sTile}, 14
    v_lshl_add_u32 v27, v1, 4, s72
    s_lshl_b32 s72, s{sTile}, 6
    s_add_u32 s72, s72, {WS_FLAG}
    v_mov_b32 v28, s72
    s_movk_i32 s84, 0x1000
    s_movk_i32 s85, 0x2000
    s_movk_i32 s86, 0x3000
    s_cmp_eq_u32 s{sRole}, 0
    s_cbranch_scc1 k2_fin''')
    so4 = ['0', 's84', 's85', 's86']
    o('s_nop 7')
    for n in range(16):
        o(f'buffer_store_dwordx4 {vr(176+4*n, 4)}, v27, s[32:35], {so4[n//4]} offen offset:{1024*(n%4)} sc1')
    o('''v_mov_b32 v29, 1
    s_waitcnt vmcnt(0)
    s_mov_b64 exec, 1
    buffer_store_dword v29, v28, s[36:39], 0 offen sc1
    s_mov_b64 exec, -1''')
    stamp(o, opt, 2, 2, 36, sWv, tmpv=(244, 245, 246))
    o('s_endpgm')
    o('k2_fin:')
    o(f'''v_lshlrev_b32 v31, 1, v31
    s_mov_b32 s83, 0x4000
    s_mov_b32 s88, {hexf(-LOG2E)}
    s_mov_b32 s89, 0xffff0000
    s_mov_b32 s73, 0x100000
    k2_poll:
    buffer_load_dword v29, v28, s[36:39], 0 offen sc1
    s_waitcnt vmcnt(0)
    v_readfirstlane_b32 s72, v29
    s_sub_u32 s73, s73, 1
    s_cselect_b32 s72, 1, s72
    s_cmp_eq_u32 s72, 0
    s_cbranch_scc1 k2_poll''')
    for n in range(16):
        o(f'buffer_load_dwordx4 {vr(vP+4*n, 4)}, v27, s[32:35], {so4[n//4]} offen offset:{1024*(n%4)} sc1')
    for j in range(8):
        o(f'''v_lshlrev_b32 v4, 16, v{vD+2*j}
        v_and_b32 v5, s89, v{vD+2*j}
        v_lshlrev_b32 v6, 16, v{vD+2*j+1}
        v_and_b32 v7, s89, v{vD+2*j+1}''')
        for i in range(2):
            n = j * 2 + i
            T, S, XX = 240, 8, 12
            xn, xs = vXN + 2 * n, vXs + 2 * n
            o(f'''v_lshlrev_b32 v{T}, 16, v{xn}
            v_and_b32 v{T+1}, s89, v{xn}
            v_lshlrev_b32 v{T+2}, 16, v{xn+1}
            v_and_b32 v{T+3}, s89, v{xn+1}
            v_accvgpr_read_b32 v{S}, a{ACS(j, i)}
            v_accvgpr_read_b32 v{S+1}, a{ACS(j, i)+1}
            v_accvgpr_read_b32 v{S+2}, a{ACS(j, i)+2}
            v_accvgpr_read_b32 v{S+3}, a{ACS(j, i)+3}
            v_pk_fma_f32 {vr(S, 2)}, {vr(T, 2)}, v[4:5], {vr(S, 2)}
            v_pk_fma_f32 {vr(S+2, 2)}, {vr(T+2, 2)}, v[6:7], {vr(S+2, 2)}
            v_lshlrev_b32 v{XX}, 16, v{xs}
            v_and_b32 v{XX+1}, s89, v{xs}
            v_lshlrev_b32 v{XX+2}, 16, v{xs+1}
            v_and_b32 v{XX+3}, s89, v{xs+1}
            s_waitcnt vmcnt({min(15-n, 15) + n})''')
            g, p = ACG(j, i), vP + 4 * n
            o(f'''v_pk_add_f32 {vr(g, 2)}, {vr(g, 2)}, {vr(p, 2)}
            v_pk_add_f32 {vr(g+2, 2)}, {vr(g+2, 2)}, {vr(p+2, 2)}
            v_pk_mul_f32 {vr(T, 2)}, {vr(g, 2)}, s[88:89] op_sel_hi:[1,0]
            v_pk_mul_f32 {vr(T+2, 2)}, {vr(g+2, 2)}, s[88:89] op_sel_hi:[1,0]
            v_exp_f32 v{T}, v{T}
            v_exp_f32 v{T+1}, v{T+1}
            v_exp_f32 v{T+2}, v{T+2}
            v_exp_f32 v{T+3}, v{T+3}
            v_pk_mul_f32 {vr(S, 2)}, {vr(S, 2)}, {vr(g, 2)}
            v_pk_add_f32 {vr(T, 2)}, {vr(T, 2)}, 1.0 op_sel_hi:[1,0]
            v_pk_add_f32 {vr(T+2, 2)}, {vr(T+2, 2)}, 1.0 op_sel_hi:[1,0]
            v_rcp_f32 v{T}, v{T}
            v_rcp_f32 v{T+1}, v{T+1}
            v_rcp_f32 v{T+2}, v{T+2}
            v_rcp_f32 v{T+3}, v{T+3}
            v_pk_mul_f32 {vr(S+2, 2)}, {vr(S+2, 2)}, {vr(g+2, 2)}
            v_pk_fma_f32 {vr(g, 2)}, {vr(S, 2)}, {vr(T, 2)}, {vr(XX, 2)}
            v_pk_fma_f32 {vr(g+2, 2)}, {vr(S+2, 2)}, {vr(T+2, 2)}, {vr(XX+2, 2)}
            buffer_store_dwordx4 {vr(g, 4)}, v31, s[28:31], {["0", "s83"][i]} offen offset:{64*j}''')
    stamp(o, opt, 2, 2, 36, sWv, tmpv=(244, 245, 246))
    o('k2_end:\ns_endpgm')
    return o.text(), descriptor(K2N, 256, 192), 65536


def build(opt):
    parts = [k0(opt), k1(opt), k2(opt)]
    names = [K0N, K1N, K2N]
    n = opt.get('nk', 3)
    head = '; S5 state-space scan + channel MLP block, gfx950. Three launches share d_ws:\n'
    head += ';  1. LayerNorm -> xn in MFMA fragment order, second-LayerNorm scale, hand-off words reset\n'
    head += ';  2. [xn] x [B_re|B_im|w1], exact chunked scan (carry handed between row blocks), GELU\n'
    head += ';  3. [h|H] x [C|w2] with K split over workgroup pairs, SiLU gate and residual\n'
    for (txt, desc, lds), name in list(zip(parts, names))[:n]:
        head += f'; @launch kernel={name} grid=(256,1,1) block=(256,1,1) lds={lds}\n'
    s = head + '.amdgcn_target "amdgcn-amd-amdhsa--gfx950"\n.text\n'
    for txt, desc, lds in parts:
        s += txt
    s += '.section .rodata,"a"\n'
    for txt, desc, lds in parts:
        s += desc
    return s


if __name__ == '__main__':
    opt = {}
    out = sys.argv[1] if len(sys.argv) > 1 else 'k.s'
    for a in sys.argv[2:]:
        k, v = a.split('=')
        opt[k] = eval(v)
    open(out, 'w').write(build(opt))
```

```python
import sys, math
from lib import *

MB = 1 << 20
WS_XN = 0
WS_A2 = 4 * MB
A2_BYTES = 176 * 131072
WS_PART = 26 * MB
WS_STATS = 34 * MB
WS_AGG = 34 * MB + 65536
WS_FLAG = 34 * MB + 131072
WS_CS = 34 * MB + 196608
WS_STAMP = 40 * MB
WS_USED = 41 * MB

LOG2E = 1.4426950408889634
K0N, K1N, K2N = 'ln_stats_kernel', 'inproj_scan_kernel', 'recurrent_scan__ssm_conv_s5__mixer_channel_mlp__prompt_kernel'


def stamp(o, opt, kidx, which, wsrd, wave_sgpr, tmpv=(250, 251, 252)):
    if not opt.get('stamp'):
        return
    L = o.label('st%d' % kidx)
    a, b, c = tmpv
    ent = ''
    if which == 0:
        ent = f'''v_mov_b32 v{a}, s94
        v_mov_b32 v{a+1}, s95
        buffer_store_dwordx4 v[{a}:{a+3}], v{a-1}, s[{wsrd}:{wsrd+3}], 0 offen offset:112'''
    o(f'''s_cmp_lg_u32 s{wave_sgpr}, 0
    s_cbranch_scc1 {L}
    s_memrealtime s[96:97]
    s_memtime s[98:99]
    s_lshl_b32 s100, s2, 7
    s_add_u32 s100, s100, {WS_STAMP + kidx * 32768 + which * 16}
    s_waitcnt lgkmcnt(0)
    v_mov_b32 v{a}, s96
    v_mov_b32 v{a+1}, s97
    v_mov_b32 v{a+2}, s98
    v_mov_b32 v{a+3}, s99
    v_mov_b32 v{a-1}, s100
    buffer_store_dwordx4 v[{a}:{a+3}], v{a-1}, s[{wsrd}:{wsrd+3}], 0 offen
    s_nop 1
    {ent}
    s_waitcnt vmcnt(0)
    {L}:''')


def bf16_round(o, v):
    o(f'v_cvt_pk_bf16_f32 v{v}, v{v}, v{v}')
    o(f'v_lshlrev_b32 v{v}, 16, v{v}')


def k0(opt):
    o = Out()
    o(kernel_head(K0N))
    if opt.get('stamp'): o('s_memrealtime s[94:95]')
    o('''s_cmp_ge_u32 s2, 256
    s_cbranch_scc1 k0_end
    s_load_dwordx2 s[4:5], s[0:1], 0
    s_load_dwordx2 s[6:7], s[0:1], 128
    s_load_dwordx2 s[32:33], s[0:1], 24
    s_load_dwordx2 s[34:35], s[0:1], 32
    s_load_dwordx2 s[36:37], s[0:1], 80
    v_lshrrev_b32 v6, 6, v0
    v_and_b32 v1, 63, v0
    v_and_b32 v2, 7, v1
    v_lshrrev_b32 v3, 3, v1
    v_readfirstlane_b32 s16, v6
    s_lshr_b32 s17, s2, 3
    s_bfe_u32 s18, s2, 0x20001
    s_and_b32 s19, s2, 1
    s_lshl_b32 s20, s17, 6
    s_lshl_b32 s21, s19, 5
    s_add_u32 s20, s20, s21
    s_lshl_b32 s21, s18, 2
    s_add_u32 s20, s20, s21
    v_lshrrev_b32 v7, 2, v2
    v_lshlrev_b32 v7, 4, v7
    v_and_b32 v56, 3, v2
    v_add3_u32 v7, v7, v56, s20
    v_lshlrev_b32 v4, 11, v7
    s_lshl_b32 s21, s16, 9
    v_lshl_add_u32 v4, v3, 4, v4
    v_add_u32 v4, s21, v4
    s_waitcnt lgkmcnt(0)''')
    srd(o, 8, 4, 4 * MB)
    srd(o, 12, 6, WS_USED)
    for it in range(4):
        o(f'buffer_load_dwordx4 v[{8+4*it}:{11+4*it}], v4, s[8:11], 0 offen offset:{128*it}' + (' nt' if opt.get('x_nt') else ''))
    if opt.get('k0_pf'):
        o(f'''s_cmp_eq_u32 s16, 1
        s_cselect_b32 s40, s34, s32
        s_cselect_b32 s41, s35, s33
        s_cmp_lt_u32 s16, 2
        s_cselect_b32 s42, 0x200000, 0
        s_mov_b32 s43, 0x20000
        s_lshl_b32 s29, s2, 13
        v_lshl_add_u32 v60, v1, 7, s29
        s_mov_b32 s44, s36
        s_mov_b32 s45, s37
        s_mov_b32 s46, {1024*3584*2}
        s_mov_b32 s47, 0x20000
        s_lshl_b32 s29, s2, 2
        s_add_u32 s29, s29, s16
        s_mul_i32 s29, s29, {56*128}
        v_lshl_add_u32 v61, v1, 7, s29
        v_mov_b32 v62, 0x40000000
        v_cmp_gt_u32 vcc, 56, v1
        s_nop 1
        v_cndmask_b32 v61, v62, v61, vcc
        buffer_load_dword v68, v60, s[40:43], 0 offen
        buffer_load_dword v69, v61, s[44:47], 0 offen''')
    stamp(o, opt, 0, 0, 12, 16, tmpv=(64, 65, 66))
    o('''v_lshrrev_b32 v5, 2, v3
    v_lshlrev_b32 v5, 17, v5
    v_and_b32 v56, 3, v3
    v_lshl_add_u32 v5, v56, 8, v5
    v_lshl_add_u32 v5, v2, 4, v5
    s_lshl_b32 s21, s16, 20
    s_lshl_b32 s22, s17, 12
    s_add_u32 s21, s21, s22
    s_lshl_b32 s22, s18, 10
    s_add_u32 s21, s21, s22
    s_lshl_b32 s22, s19, 7
    s_add_u32 s21, s21, s22
    v_add_u32 v5, s21, v5
    s_mov_b32 s24, 0x40000
    s_mov_b32 s25, 0x80000
    s_mov_b32 s26, 0xc0000
    s_mov_b32 s27, 0x3f803f80
    s_mov_b32 s28, 0xffff0000
    v_lshlrev_b32 v6, 5, v2
    s_lshl_b32 s22, s16, 3
    v_add_u32 v7, s22, v6''')
    o(f'''s_lshl_b32 s22, s2, 8
    v_lshl_add_u32 v58, v1, 2, s22
    s_cmp_lg_u32 s16, 1
    s_cbranch_scc1 k0_noagg
    v_add_u32 v59, {WS_AGG}, v58
    v_mov_b32 v60, -1
    buffer_store_dword v60, v59, s[12:15], 0 offen
    k0_noagg:
    s_cmp_lg_u32 s16, 2
    s_cbranch_scc1 k0_noflag
    s_cmp_ge_u32 s2, 128
    s_cbranch_scc1 k0_noflag
    v_add_u32 v59, {WS_FLAG}, v58
    v_mov_b32 v60, 0
    buffer_store_dword v60, v59, s[12:15], 0 offen
    k0_noflag:
    v_mov_b32 v56, 0
    v_mov_b32 v57, 0
    v_mov_b32 v58, 0
    v_mov_b32 v59, 0
    s_waitcnt vmcnt({2 if opt.get('k0_pf') else 0})''')

    def sums(regs):
        for n, r in enumerate(regs):
            o(f'v_dot2_f32_bf16 v{56+2*(n&1)}, v{r}, s27, v{56+2*(n&1)}')
            o(f'v_dot2_f32_bf16 v{57+2*(n&1)}, v{r}, v{r}, v{57+2*(n&1)}')

    def reduce(ldsoff):
        o(f'''s_nop 2
        v_add_f32 v56, v56, v58
        v_add_f32 v57, v57, v59
        s_nop 1
        v_add_f32_dpp v56, v56, v56 row_ror:8 row_mask:0xf bank_mask:0xf
        v_add_f32_dpp v57, v57, v57 row_ror:8 row_mask:0xf bank_mask:0xf
        v_mov_b32 v58, v56
        v_mov_b32 v59, v57
        s_nop 1
        v_permlane16_swap_b32 v56, v58
        v_permlane16_swap_b32 v57, v59
        s_nop 1
        v_add_f32 v56, v56, v58
        v_add_f32 v57, v57, v59
        v_mov_b32 v58, v56
        v_mov_b32 v59, v57
        s_nop 1
        v_permlane32_swap_b32 v56, v58
        v_permlane32_swap_b32 v57, v59
        s_nop 1
        v_add_f32 v56, v56, v58
        v_add_f32 v57, v57, v59
        ds_write_b64 v7, v[56:57] offset:{ldsoff}
        s_waitcnt lgkmcnt(0)
        s_barrier
        ds_read_b128 v[56:59], v6 offset:{ldsoff}
        ds_read_b128 v[60:63], v6 offset:{ldsoff+16}
        s_waitcnt lgkmcnt(0)
        v_pk_add_f32 v[56:57], v[56:57], v[58:59]
        v_pk_add_f32 v[60:61], v[60:61], v[62:63]
        v_pk_add_f32 v[56:57], v[56:57], v[60:61]
        v_mul_f32 v56, {hexf(1/1024)}, v56
        v_mul_f32 v57, {hexf(1/1024)}, v57
        v_fma_f32 v57, -v56, v56, v57
        v_max_f32 v57, 0, v57''')
        bf16_round(o, 56)
        bf16_round(o, 57)
        o(f'v_add_f32 v57, {hexf(1e-5)}, v57')
        bf16_round(o, 57)
        o('v_sqrt_f32 v57, v57\ns_nop 0')
        bf16_round(o, 57)
        o('v_rcp_f32 v57, v57\ns_nop 0')

    sums(range(8, 24))
    reduce(0)
    for p in range(16):
        r, t = 8 + p, 24 + 2 * p
        o(f'v_lshlrev_b32 v{t}, 16, v{r}\nv_and_b32 v{t+1}, s28, v{r}')
    for p in range(16):
        t = 24 + 2 * p
        o(f'v_pk_add_f32 v[{t}:{t+1}], v[{t}:{t+1}], v[56:57] op_sel_hi:[1,0] neg_lo:[0,1] neg_hi:[0,1]')
    for p in range(16):
        r, t = 8 + p, 24 + 2 * p
        o(f'v_cvt_pk_bf16_f32 v{r}, v{t}, v{t+1}')
    for p in range(16):
        r, t = 8 + p, 24 + 2 * p
        o(f'v_lshlrev_b32 v{t}, 16, v{r}\nv_and_b32 v{t+1}, s28, v{r}')
    for p in range(16):
        t = 24 + 2 * p
        o(f'v_pk_mul_f32 v[{t}:{t+1}], v[{t}:{t+1}], v[56:57] op_sel:[0,1] op_sel_hi:[1,1]')
    for p in range(16):
        r, t = 8 + p, 24 + 2 * p
        o(f'v_cvt_pk_bf16_f32 v{r}, v{t}, v{t+1}')
        if p % 4 == 3:
            it = p // 4
            so = ['0', 's24', 's25', 's26'][it]
            o(f'buffer_store_dwordx4 v[{8+4*it}:{11+4*it}], v5, s[12:15], {so} offen')
    o('v_mov_b32 v56, 0\nv_mov_b32 v57, 0\nv_mov_b32 v58, 0\nv_mov_b32 v59, 0')
    sums(range(8, 24))
    reduce(256)
    o(f'''v_mul_f32 v56, v56, v57
    s_cmp_lg_u32 s16, 0
    s_cbranch_scc1 k0_fin
    s_lshl_b32 s21, s17, 9
    s_lshl_b32 s22, s19, 8
    s_add_u32 s21, s21, s22
    s_lshl_b32 s22, s18, 2
    s_add_u32 s21, s21, s22
    s_add_u32 s21, s21, {WS_STATS}
    v_add_u32 v6, s21, v6
    s_mov_b64 exec, 0xff
    buffer_store_dword v57, v6, s[12:15], 0 offen
    buffer_store_dword v56, v6, s[12:15], 0 offen offset:16
    s_mov_b64 exec, -1
    k0_fin:''')
    stamp(o, opt, 0, 1, 12, 16, tmpv=(64, 65, 66))
    o('k0_end:\ns_endpgm')
    return o.text(), descriptor(K0N, 72, sgpr=102 if opt.get('stamp') else 56), 512


K1_SLOT = 22528
K1_BIAS = 0
K1_CSUM = K1_BIAS + 1024
K1_AGGL = K1_CSUM + 1024
K1_CIN = K1_AGGL + 4096
K1_RING = K1_CIN + 4096
K1_TR = K1_RING + 4 * K1_SLOT
K1_LDS = K1_TR + 4 * 9216


def k1(opt):
    o = Out()
    ACS = lambda jt, i: 80 + (jt * 4 + i) * 4
    ACM = lambda a, i: 144 + (a * 4 + i) * 4
    XR = lambda t, i: (t % 4) * 16 + i * 4
    WB = lambda t, tile: 64 + (t % 2) * 44 + tile * 4
    vX, vB, vW, vS, vWr = 2, 3, 4, 8, 12
    sWv, sRb, sCb, sTg, sX, sB, sW, sM0S, sM0W, sM0H, sHalf, sCnt, sPar = 50, 51, 52, 53, 54, 55, 56, 57, 58, 59, 60, 62, 63
    o(kernel_head(K1N))
    if opt.get('stamp'): o('s_memrealtime s[94:95]')
    o('''s_cmp_ge_u32 s2, 256
    s_cbranch_scc1 k1_end
    s_load_dwordx2 s[4:5], s[0:1], 8
    s_load_dwordx2 s[6:7], s[0:1], 16
    s_load_dwordx2 s[36:37], s[0:1], 24
    s_load_dwordx2 s[38:39], s[0:1], 32
    s_load_dwordx2 s[40:41], s[0:1], 56
    s_load_dwordx2 s[44:45], s[0:1], 80
    s_load_dwordx2 s[46:47], s[0:1], 88
    s_load_dwordx2 s[48:49], s[0:1], 128
    s_load_dwordx2 s[82:83], s[0:1], 40
    s_load_dwordx2 s[84:85], s[0:1], 48
    s_load_dwordx2 s[86:87], s[0:1], 96
    v_lshrrev_b32 v40, 6, v0
    v_and_b32 v1, 63, v0
    v_lshrrev_b32 v41, 4, v1
    v_and_b32 v42, 15, v1''')
    o(f'''v_readfirstlane_b32 s{sWv}, v40
    s_and_b32 s64, s2, 7
    s_lshr_b32 s65, s2, 3
    s_and_b32 s{sRb}, s64, 1
    s_lshl_b32 s{sRb}, s{sRb}, 2
    s_and_b32 s66, s65, 3
    s_add_u32 s{sRb}, s{sRb}, s66
    s_lshr_b32 s{sCb}, s64, 1
    s_lshl_b32 s{sCb}, s{sCb}, 3
    s_lshr_b32 s66, s65, 2
    s_add_u32 s{sCb}, s{sCb}, s66
    s_lshl_b32 s{sTg}, s{sRb}, 2
    s_add_u32 s{sTg}, s{sTg}, s{sWv}
    s_and_b32 s{sPar}, s{sCb}, 1
    s_lshl_b32 s66, s{sTg}, 12
    v_lshl_add_u32 v{vX}, v1, 4, s66''')
    o(f'''v_lshrrev_b32 v43, 3, v1
    s_lshl_b32 s66, s{sWv}, 3
    s_lshl_b32 s67, s{sCb}, 5
    s_add_u32 s67, s67, s66
    v_add_u32 v44, s67, v43
    v_lshlrev_b32 v44, 11, v44
    s_lshl_b32 s66, s{sWv}, 2
    v_add_u32 v45, s66, v41
    v_and_b32 v45, 7, v45
    v_and_b32 v46, 7, v1
    v_xor_b32 v45, v45, v46
    v_lshl_add_u32 v{vB}, v45, 4, v44''')
    o(f'''s_mul_i32 s67, s{sCb}, 224
    s_lshl_b32 s68, s{sPar}, 1
    s_movk_i32 s69, 4682
    s_movk_i32 s70, 7168''')
    for j in range(4):
        if j < 3:
            o(f's_mul_i32 s66, s{sWv}, 192\ns_add_u32 s66, s66, {64*j}')
        else:
            o(f's_lshr_b32 s66, s{sWv}, 1\ns_lshl_b32 s66, s66, 6\ns_add_u32 s66, s66, 768')
        o(f'''v_add_u32 v43, s66, v1
        v_mul_u32_u24 v44, s69, v43
        v_lshrrev_b32 v44, 16, v44
        v_mul_u32_u24 v45, 14, v44
        v_sub_u32 v45, v43, v45
        v_add_u32 v45, s68, v45
        v_subrev_u32 v46, 14, v45
        v_min_u32 v45, v45, v46
        v_lshrrev_b32 v46, 2, v44
        v_lshrrev_b32 v47, 3, v44
        v_xor_b32 v46, v46, v47
        v_and_b32 v46, 1, v46
        v_mul_u32_u24 v46, 12, v46
        v_xor_b32 v44, v44, v46
        v_mul_u32_u24 v44, s70, v44
        v_lshl_add_u32 v44, v45, 4, v44
        v_add_u32 v{vW+j}, s67, v44''')
    o(f'''s_lshl_b32 s{sM0S}, s{sWv}, 10
    s_mul_i32 s{sM0W}, s{sWv}, 3072
    s_add_u32 s{sM0W}, s{sM0W}, 8192
    s_lshr_b32 s{sM0H}, s{sWv}, 1
    s_lshl_b32 s{sM0H}, s{sM0H}, 10
    s_add_u32 s{sM0H}, s{sM0H}, {8192+12*1024}
    s_and_b32 s66, s{sWv}, 1
    s_cmp_eq_u32 s66, 0
    s_cselect_b32 s{sHalf}, -1, 0
    s_cselect_b32 s{sHalf+1}, 0, -1
    s_mov_b32 s{sX}, 0
    s_mov_b32 s{sB}, 0
    s_mov_b32 s{sW}, 0''')
    o(f'''s_lshl_b32 s66, s{sCb}, 6
    v_lshl_add_u32 v48, v42, 1, s66
    v_lshrrev_b32 v43, 4, v0
    v_add_u32 v43, s{sPar}, v43
    v_cmp_eq_u32 vcc, 7, v43
    v_and_b32 v44, 15, v0
    s_nop 0
    v_cndmask_b32 v43, v43, 0, vcc
    v_lshl_add_u32 v44, v43, 4, v44
    s_mul_i32 s66, s{sCb}, 112
    v_add_u32 v44, s66, v44
    v_lshlrev_b32 v44, 1, v44
    v_mov_b32 v45, 0x40000000
    v_cmp_gt_u32 vcc, 112, v0
    v_lshlrev_b32 v50, 5, v42
    s_lshl_b32 s66, s{sTg}, 9
    v_cndmask_b32 v49, v45, v44, vcc
    v_add_u32 v50, s66, v50
    s_waitcnt lgkmcnt(0)''')
    srd(o, 8, 48, 4 * MB, WS_XN)
    srd(o, 12, 36, 2 * MB)
    srd(o, 16, 38, 2 * MB)
    srd(o, 20, 44, 1024 * 3584 * 2)
    srd(o, 24, 48, A2_BYTES, WS_A2)
    srd(o, 28, 48, 65536, WS_AGG)
    srd(o, 32, 48, WS_USED)
    srd(o, 64, 4, 2048)
    srd(o, 68, 6, 2048)
    srd(o, 72, 40, 2048)
    srd(o, 76, 46, 7168)
    if opt.get('k1_pf'):
        o(f'''s_cmp_eq_u32 s{sWv}, 1
        s_cselect_b32 s88, s84, s82
        s_cselect_b32 s89, s85, s83
        s_cmp_lt_u32 s{sWv}, 2
        s_cselect_b32 s90, 0x200000, 0
        s_mov_b32 s91, 0x20000
        s_mov_b32 s84, s86
        s_mov_b32 s85, s87
        s_mov_b32 s86, {3584*2048}
        s_mov_b32 s87, 0x20000
        s_lshl_b32 s81, s2, 13
        v_lshl_add_u32 v30, v1, 7, s81
        s_lshl_b32 s81, s2, 2
        s_add_u32 s81, s81, s{sWv}
        s_mul_i32 s81, s81, {56*128}
        v_lshl_add_u32 v31, v1, 7, s81
        v_mov_b32 v43, 0x40000000
        v_cmp_gt_u32 vcc, 56, v1
        s_lshr_b32 s92, s2, 3
        s_mul_i32 s93, s92, 43
        s_lshr_b32 s93, s93, 7
        v_cndmask_b32 v31, v43, v31, vcc
        s_mul_i32 s93, s93, 3
        s_sub_u32 s92, s92, s93
        s_sub_u32 s92, {opt.get('k1_pf_first', 3)}, s92''')
    stamp(o, opt, 1, 0, 32, sWv, tmpv=(60, 61, 62))

    tr = Tracker()
    pro = []
    pro += [VM('buffer_load_ushort v52, v48, s[64:67], 0 offen', 'c'),
            VM('buffer_load_ushort v53, v48, s[64:67], 0 offen offset:32', 'c'),
            VM('buffer_load_ushort v54, v48, s[68:71], 0 offen', 'c'),
            VM('buffer_load_ushort v55, v48, s[68:71], 0 offen offset:32', 'c'),
            VM('buffer_load_ushort v56, v48, s[72:75], 0 offen', 'c'),
            VM('buffer_load_ushort v57, v48, s[72:75], 0 offen offset:32', 'c'),
            VM('buffer_load_ushort v58, v49, s[76:79], 0 offen', 'c'),
            f's_mov_b32 s80, {WS_STATS}',
            VM('buffer_load_dwordx4 v[32:35], v50, s[32:35], s80 offen', 'c'),
            VM('buffer_load_dwordx4 v[36:39], v50, s[32:35], s80 offen offset:16', 'c')]

    def dma(part, st):
        base = K1_RING + (st % 4) * K1_SLOT
        tag = ('D', st)
        if part == 1:
            return [[f's_add_u32 m0, s{sM0S}, {base}'], [VM(f'buffer_load_dwordx4 v{vB}, s[12:15], s{sB} offen lds', tag)],
                    [f's_add_u32 m0, s{sM0S}, {base+4096}'], [VM(f'buffer_load_dwordx4 v{vB}, s[16:19], s{sB} offen lds', tag)],
                    [f's_add_u32 m0, s{sM0W}, {base}', f's_add_u32 s{sB}, s{sB}, 128'],
                    [VM(f'buffer_load_dwordx4 v{vW}, s[20:23], s{sW} offen lds', tag)]]
        return [[f's_add_u32 m0, s{sM0W}, {base+1024}'], [VM(f'buffer_load_dwordx4 v{vW+1}, s[20:23], s{sW} offen lds', tag)],
                [f's_add_u32 m0, s{sM0W}, {base+2048}'], [VM(f'buffer_load_dwordx4 v{vW+2}, s[20:23], s{sW} offen lds', tag)],
                [f's_add_u32 m0, s{sM0H}, {base}'],
                [f's_mov_b64 exec, s[{sHalf}:{sHalf+1}]', VM(f'buffer_load_dwordx4 v{vW+3}, s[20:23], s{sW} offen lds', tag), 's_mov_b64 exec, -1',
                 f's_add_u32 s{sW}, s{sW}, {64*7168}']]

    def xloads(t):
        g = [[VM(f'buffer_load_dwordx4 {ar(XR(t, i), 4)}, v{vX}, s[8:11], s{sX} offen offset:{1024*i}', ('X', t))] for i in range(4)]
        g[3].append(f's_add_u32 s{sX}, s{sX}, 131072')
        return g

    def wreads(t):
        st, hs = t // 2, t % 2
        sl = st % 4
        so = (sl % 2) * K1_SLOT
        hi = sl // 2
        r = []
        for jt in range(4):
            r.append(DS(f'ds_read_b128 {ar(WB(t, jt), 4)}, v{vS+2*hi+hs} offset:{so+jt*2048}', ('R', t)))
        for a in range(7):
            for sec in range(2):
                r.append(DS(f'ds_read_b64_tr_b16 {ar(WB(t, 4+a)+2*sec, 2)}, v{vWr+hi} offset:{so+hs*7168+sec*1792+a*32}', ('R', t)))
        return r

    def flat(groups):
        out = []
        for g in groups:
            out += g
            if len(g) and isinstance(g[0], str) and 'm0' in g[0] and len(g) == 1:
                out.append('s_nop 0')
        return out

    pro += flat(dma(1, 0)) + flat(dma(2, 0)) + flat(xloads(0)) + flat(dma(1, 1)) + flat(dma(2, 1)) + flat(xloads(1)) + flat(dma(1, 2)) + flat(xloads(2))
    pro += [f'''v_lshrrev_b32 v43, 1, v42
    v_xor_b32 v44, v43, v41
    v_lshlrev_b32 v44, 4, v44
    v_lshl_add_u32 v44, v42, 7, v44
    v_xor_b32 v45, 64, v44
    v_add_u32 v{vS}, {K1_RING}, v44
    v_add_u32 v{vS+1}, {K1_RING}, v45
    v_add_u32 v{vS+2}, {K1_RING+2*K1_SLOT}, v44
    v_add_u32 v{vS+3}, {K1_RING+2*K1_SLOT}, v45
    v_lshrrev_b32 v43, 1, v41
    v_lshlrev_b32 v43, 4, v43
    v_and_b32 v44, 1, v41
    v_lshl_add_u32 v43, v44, 2, v43
    v_lshrrev_b32 v44, 2, v42
    v_add_u32 v43, v43, v44
    v_mul_u32_u24 v43, 224, v43
    v_and_b32 v44, 3, v42
    v_lshl_add_u32 v43, v44, 3, v43
    v_add_u32 v{vWr}, {K1_RING+8192}, v43
    v_add_u32 v{vWr+1}, {K1_RING+8192+2*K1_SLOT}, v43''']
    pro += [f'v_mov_b32 v{r}, 0' for r in range(80, 256)]
    pro += [Wait('c', vm=['c'])]
    cst = []
    for c in range(2):
        lre, lim, ldt = 52 + c, 54 + c, 56 + c
        lr, li, nli, cf = 14 + 3 * c, 15 + 3 * c, 16 + 3 * c, 20 + 2 * c
        cst.append(f'''v_lshlrev_b32 v{lre}, 16, v{lre}
        v_lshlrev_b32 v{lim}, 16, v{lim}
        v_lshlrev_b32 v{ldt}, 16, v{ldt}
        v_mul_f32 v{ldt}, {hexf(LOG2E)}, v{ldt}
        v_exp_f32 v{ldt}, v{ldt}
        s_nop 0
        v_cvt_pk_bf16_f32 v{ldt}, v{ldt}, v{ldt}
        v_lshlrev_b32 v{ldt}, 16, v{ldt}
        v_mul_f32 v60, v{ldt}, v{lre}
        v_mul_f32 v61, v{ldt}, v{lim}
        v_mul_f32 v60, {hexf(LOG2E)}, v60
        v_mul_f32 v61, 0.15915494, v61
        v_exp_f32 v60, v60
        v_fract_f32 v61, v61
        v_cos_f32 v62, v61
        v_sin_f32 v63, v61
        s_nop 0
        v_mul_f32 v{lr}, v60, v62
        v_mul_f32 v{li}, v60, v63
        v_sub_f32 v{nli}, 0, v{li}
        v_add_f32 v60, -1.0, v{lr}
        v_mul_f32 v61, v{lre}, v{lre}
        v_fmac_f32 v61, v{lim}, v{lim}
        v_rcp_f32 v61, v61
        v_mul_f32 v62, v60, v{lre}
        v_fmac_f32 v62, v{li}, v{lim}
        v_mul_f32 v63, v{li}, v{lre}
        v_fma_f32 v63, -v60, v{lim}, v63
        v_add_f32 v61, v61, v61
        v_mul_f32 v{cf}, v62, v61
        v_mul_f32 v{cf+1}, v63, v61''')
    cst.append('''v_and_b32 v43, 1, v41
    v_cmp_eq_u32 vcc, 1, v43
    s_nop 1
    v_cndmask_b32 v24, v14, v17, vcc
    v_cndmask_b32 v25, v15, v18, vcc''')

    def square(re, im):
        return f'''v_mul_f32 v60, v{im}, v{im}
        v_mul_f32 v{im}, v{re}, v{im}
        v_fma_f32 v{re}, v{re}, v{re}, -v60
        v_add_f32 v{im}, v{im}, v{im}'''
    cst += [square(24, 25) for _ in range(4)]
    cst.append('v_mov_b32 v28, v24\nv_mov_b32 v29, v25\nv_sub_f32 v26, 0, v25')
    cst += [square(28, 29) for _ in range(4)]
    cst.append('v_sub_f32 v27, 0, v29')
    cst.append(f'''v_lshlrev_b32 v58, 16, v58
    v_lshlrev_b32 v43, 2, v0''')
    cst.append(DS(f'ds_write_b32 v43, v58 offset:{K1_BIAS}', 'b'))
    pro += cst
    pro += [Wait('p0', vm=[('D', 0)], lg='all'), 's_barrier']
    pro += wreads(0)

    def step(t, nst):
        st, hs = t // 2, t % 2
        mf = []
        for jt in range(4):
            for i in range(4):
                mf.append(f'v_mfma_f32_16x16x32_bf16 {vr(ACS(jt, i), 4)}, {ar(XR(t, i), 4)}, {ar(WB(t, jt), 4)}, {vr(ACS(jt, i), 4)}')
        for a in range(7):
            for i in range(4):
                mf.append(f'v_mfma_f32_16x16x32_bf16 {vr(ACM(a, i), 4)}, {ar(WB(t, 4+a), 4)}, {ar(XR(t, i), 4)}, {vr(ACM(a, i), 4)}')
        f = {}
        place(f, -1, Wait(('s', t % 8), vm=[('X', t)], lg='all'))
        rd = wreads(t + 1)
        vmg = (dma(2, st + 2) if hs == 0 else dma(1, st + 3))
        xg = xloads(t + 3)
        ds_gaps = opt.get('k1_ds_gaps', [0, 1, 3, 4, 6, 7, 9, 10, 12, 13, 15, 16, 18, 19, 21, 22, 24, 25])
        for g, r in zip(ds_gaps, rd):
            place(f, g, r)
        vm_gaps = opt.get('k1_vm_gaps', [2, 5, 8, 11, 14, 17, 20, 23, 26, 28])
        groups = [xg[0], vmg[0], vmg[1], xg[1], vmg[2], vmg[3], xg[2], vmg[4], vmg[5], xg[3]]
        for g, grp in zip(vm_gaps, groups):
            place(f, g, *grp)
        if hs == 0:
            place(f, 43, Wait(('b', t % 8), vm=[('D', st + 1)]), 's_barrier')
        return interleave(mf, f)

    body = [step(t, 16) for t in range(32)]
    tr.run(pro)
    for b in body:
        tr.run(b)
    o.items(tr, pro)
    o(f's_mov_b32 s{sCnt}, 4')
    o('k1_loop:')
    for t in range(8, 16):
        o.items(tr, body[t])
    o(f'''s_sub_u32 s{sCnt}, s{sCnt}, 1
    s_cmp_lg_u32 s{sCnt}, 0
    s_cbranch_scc1 k1_loop''')
    stamp(o, opt, 1, 1, 32, sWv, tmpv=(60, 61, 62))
    o(f'''s_mov_b32 s64, {hexf(-2*LOG2E*math.sqrt(2/math.pi))}
    s_mov_b32 s65, {hexf(-2*LOG2E*math.sqrt(2/math.pi)*0.044715)}
    v_lshrrev_b32 v41, 4, v1
    v_and_b32 v42, 15, v1
    s_lshl_b32 s66, s{sWv}, 10
    v_lshlrev_b32 v3, 8, v41
    v_lshl_add_u32 v3, v42, 3, v3
    v_add_u32 v3, s66, v3
    v_and_b32 v4, 31, v1
    v_lshlrev_b32 v4, 3, v4
    v_lshlrev_b32 v5, 4, v41
    s_nop 7''')
    for c in range(2):
        cf = vr(20 + 2 * c, 2)
        for i in range(4):
            for rp in (0, 2):
                re, im = vr(ACS(c, i) + rp, 2), vr(ACS(2 + c, i) + rp, 2)
                t = vr(44 + 2 * ((i * 2 + rp // 2) % 2), 2)
                o(f'''v_pk_mul_f32 {t}, {re}, {cf} op_sel:[0,1] op_sel_hi:[1,1]
                v_pk_mul_f32 {re}, {re}, {cf} op_sel_hi:[1,0]
                v_pk_fma_f32 {re}, {im}, {cf}, {re} op_sel:[0,1,0] op_sel_hi:[1,1,1] neg_lo:[0,1,0] neg_hi:[0,1,0]
                v_pk_fma_f32 {im}, {im}, {cf}, {t} op_sel_hi:[1,0,1]''')
    U = lambda jt, n: ACS(jt, n // 4) + n % 4
    prev = [(U(0, 0), U(2, 0)), (U(1, 0), U(3, 0))]
    for n in range(1, 16):
        cur = [(44 + 2 * (n % 2), 45 + 2 * (n % 2)), (48 + 2 * (n % 2), 49 + 2 * (n % 2))]
        for c in range(2):
            o(f'v_fma_f32 v{cur[c][0]}, v{14+3*c}, v{prev[c][0]}, v{U(c, n)}')
            o(f'v_fma_f32 v{cur[c][1]}, v{14+3*c}, v{prev[c][1]}, v{U(2+c, n)}')
        for c in range(2):
            o(f'v_fmac_f32 v{cur[c][0]}, v{16+3*c}, v{prev[c][1]}')
            o(f'v_fmac_f32 v{cur[c][1]}, v{15+3*c}, v{prev[c][0]}')
        prev = cur
    o(f'''ds_write_b64 v3, {vr(prev[0][0], 2)} offset:{K1_AGGL}
    ds_write_b64 v3, {vr(prev[1][0], 2)} offset:{K1_AGGL+128}
    ds_read_b128 v[6:9], v5 offset:{K1_BIAS}
    s_waitcnt lgkmcnt(0)
    s_barrier
    s_cmp_lg_u32 s{sWv}, 0
    s_cbranch_scc1 k1_nopub''')

    def horner16(init, store):
        for s in range(16):
            o(f'ds_read_b64 {vr(44+2*s, 2)}, v4 offset:{K1_AGGL+256*s}')
        o('s_waitcnt lgkmcnt(0)')
        prev = init
        for s in range(16):
            a = 44 + 2 * s
            if store:
                o(f'ds_write_b64 v4, {vr(prev, 2)} offset:{K1_CIN+256*s}')
                if s == 15:
                    break
            if prev is not None:
                o(f'''v_fmac_f32 v{a}, v24, v{prev}
                v_fmac_f32 v{a+1}, v24, v{prev+1}
                v_fmac_f32 v{a}, v26, v{prev+1}
                v_fmac_f32 v{a+1}, v25, v{prev}''')
            prev = a
        return prev
    last = horner16(None, False)
    o(f'''s_lshl_b32 s66, s{sCb}, 3
    s_add_u32 s66, s66, s{sRb}
    s_lshl_b32 s66, s66, 8
    v_mov_b32 v10, 0x7fc00000
    v_cmp_eq_u32 vcc, -1, v{last}
    v_cmp_eq_u32 s[68:69], -1, v{last+1}
    s_nop 1
    v_cndmask_b32 v{last}, v{last}, v10, vcc
    v_cndmask_b32 v{last+1}, v{last+1}, v10, s[68:69]
    s_mov_b32 exec_hi, 0
    buffer_store_dwordx2 {vr(last, 2)}, v4, s[28:31], s66 offen sc1
    s_mov_b32 exec_hi, -1
    k1_nopub:''')
    o(f'''s_mul_i32 s70, s{sCb}, 7
    s_add_u32 s70, s70, s{sPar}
    s_lshr_b32 s70, s70, 1
    s_add_u32 s71, s70, 67
    s_add_u32 s72, s70, 63
    s_cmp_eq_u32 s{sPar}, 0
    s_cselect_b32 s71, s71, s72
    s_lshl_b32 s71, s71, 17
    s_add_u32 s70, s70, 64
    s_lshl_b32 s70, s70, 17
    s_lshl_b32 s72, s{sPar}, 3
    v_add_u32 v13, s72, v{vX}''')
    kk = 's[64:65]'
    for a in range(7):
        bias = 6 if a % 2 == 0 else 52
        nb = 52 if a % 2 == 0 else 6
        if a > 0:
            o('s_waitcnt lgkmcnt(0)')
        if a < 6:
            o(f'ds_read_b128 {vr(nb, 4)}, v5 offset:{K1_BIAS+64*(a+1)}')
        for ih in range(2):
            prs = [(i, rp) for i in (2 * ih, 2 * ih + 1) for rp in (0, 2)]
            X = [vr(ACM(a, i) + rp, 2) for i, rp in prs]
            T = [44 + 2 * n for n in range(4)]
            for n, (i, rp) in enumerate(prs):
                sel = 'op_sel:[0,1,0] op_sel_hi:[1,1,1]' if i % 2 else 'op_sel_hi:[1,0,1]'
                o(f'v_pk_fma_f32 {X[n]}, {X[n]}, {vr(32+(i//2)*2, 2)}, {vr(bias+rp, 2)} {sel}')
            for n in range(4):
                o(f'v_pk_mul_f32 {vr(T[n], 2)}, {X[n]}, {X[n]}')
            for n in range(4):
                o(f'v_pk_fma_f32 {vr(T[n], 2)}, {vr(T[n], 2)}, {kk}, {kk} op_sel:[0,1,0] op_sel_hi:[1,1,0]')
            for n in range(4):
                o(f'v_pk_mul_f32 {vr(T[n], 2)}, {vr(T[n], 2)}, {X[n]}')
            for n in range(8):
                o(f'v_exp_f32 v{44+n}, v{44+n}')
            for n in range(4):
                o(f'v_pk_add_f32 {vr(T[n], 2)}, {vr(T[n], 2)}, 1.0 op_sel_hi:[1,0]')
            for n in range(8):
                o(f'v_rcp_f32 v{44+n}, v{44+n}')
            for n in range(4):
                o(f'v_pk_mul_f32 {X[n]}, {X[n]}, {vr(T[n], 2)}')
            for i in (2 * ih, 2 * ih + 1):
                src = ACM(a, i)
                if a == 6:
                    dst = src
                elif a % 2 == 0:
                    dst = src
                else:
                    dst = ACM(a - 1, i) + 2
                o(f'v_cvt_pk_bf16_f32 v{dst}, v{src}, v{src+1}')
                o(f'v_cvt_pk_bf16_f32 v{dst+1}, v{src+2}, v{src+3}')
            for i in (2 * ih, 2 * ih + 1):
                if a == 6:
                    o(f'buffer_store_dwordx2 {vr(ACM(a, i), 2)}, v13, s[24:27], s71 offen offset:{1024*i}')
                elif a % 2 == 1:
                    o(f'buffer_store_dwordx4 {vr(ACM(a-1, i), 4)}, v{vX}, s[24:27], s70 offen offset:{1024*i}')
        if a % 2 == 1:
            o('s_add_u32 s70, s70, 131072')
    stamp(o, opt, 1, 2, 32, sWv, tmpv=(60, 61, 62))
    o(f'''s_cmp_lg_u32 s{sWv}, 0
    s_cbranch_scc1 k1_nocarry
    s_lshl_b32 s66, s{sCb}, 3
    s_add_u32 s66, s66, s{sRb}''')
    for j in range(1, 8):
        o(f'''s_sub_u32 s67, s66, {j}
        s_lshl_b32 s67, s67, 8
        s_cmp_ge_u32 s{sRb}, {j}
        s_cselect_b32 s{80+j}, s67, 0x20000''')
    o('s_mov_b32 s73, 0x100000\nk1_poll:')
    for j in range(1, 8):
        o(f'buffer_load_dwordx2 {vr(144+2*j, 2)}, v4, s[28:31], s{80+j} offen sc1')
    o('s_waitcnt vmcnt(0)')
    o('v_cmp_eq_u32 s[68:69], -1, v146')
    for r in range(147, 160):
        o(f'''v_cmp_eq_u32 vcc, -1, v{r}
        s_or_b64 s[68:69], s[68:69], vcc''')
    o('''s_sub_u32 s73, s73, 1
    s_cselect_b64 s[68:69], 0, s[68:69]
    s_cmp_lg_u64 s[68:69], 0
    s_cbranch_scc1 k1_poll''')
    prev = 144 + 14
    for j in range(6, 0, -1):
        a = 144 + 2 * j
        o(f'''v_fmac_f32 v{a}, v28, v{prev}
        v_fmac_f32 v{a+1}, v28, v{prev+1}
        v_fmac_f32 v{a}, v27, v{prev+1}
        v_fmac_f32 v{a+1}, v29, v{prev}''')
        prev = a
    horner16(prev, True)
    o(f'''s_waitcnt lgkmcnt(0)
    k1_nocarry:
    s_barrier
    ds_read_b64 v[44:45], v3 offset:{K1_CIN}
    ds_read_b64 v[46:47], v3 offset:{K1_CIN+128}
    s_mul_i32 s66, s{sWv}, 9216
    s_add_u32 s66, s66, {K1_TR}
    v_mul_u32_u24 v6, 144, v42
    v_lshl_add_u32 v6, v41, 5, v6
    v_add_u32 v6, s66, v6
    v_lshrrev_b32 v7, 2, v42
    v_lshl_add_u32 v7, v41, 3, v7
    v_mul_u32_u24 v7, 144, v7
    v_and_b32 v8, 3, v42
    v_lshl_add_u32 v7, v8, 5, v7
    v_add_u32 v7, s66, v7
    s_lshl_b32 s70, s{sCb}, 17
    s_add_u32 s71, s70, {32*131072}
    s_waitcnt lgkmcnt(0)''')
    prev = [(44, 45), (46, 47)]
    for n in range(16):
        cur = [(U(0, n), U(2, n)), (U(1, n), U(3, n))]
        for c in range(2):
            o(f'v_fmac_f32 v{cur[c][0]}, v{14+3*c}, v{prev[c][0]}')
            o(f'v_fmac_f32 v{cur[c][1]}, v{14+3*c}, v{prev[c][1]}')
        for c in range(2):
            o(f'v_fmac_f32 v{cur[c][0]}, v{16+3*c}, v{prev[c][1]}')
            o(f'v_fmac_f32 v{cur[c][1]}, v{15+3*c}, v{prev[c][0]}')
        prev = cur
    for jt in range(4):
        ng = '-' if jt >= 2 else ''
        for h in range(2):
            d = ACS(jt, 2 * h)
            for k in range(4):
                s = ACS(jt, 2 * h + k // 2) + 2 * (k % 2)
                o(f'v_cvt_pk_bf16_f32 v{d+k}, {ng}v{s}, {ng}v{s+1}')
            o(f'ds_write_b128 v6, {vr(d, 4)} offset:{jt*16*144+16*h}')
    o('s_waitcnt lgkmcnt(0)')
    for grp in range(2):
        for i in range(4):
            d = 144 + (grp * 4 + i) * 4
            for sec in range(2):
                o(f'ds_read_b64_tr_b16 {vr(d+2*sec, 2)}, v7 offset:{grp*4608+sec*576+i*8}')
    for grp in range(2):
        for i in range(4):
            d = 144 + (grp * 4 + i) * 4
            o(f's_waitcnt lgkmcnt({14-2*(grp*4+i)})')
            o(f'buffer_store_dwordx4 {vr(d, 4)}, v{vX}, s[24:27], s{70+grp} offen offset:{1024*i}')
    stamp(o, opt, 1, 3, 32, sWv, tmpv=(60, 61, 62))
    o('k1_end:\ns_endpgm')
    return o.text(), descriptor(K1N, 256, 152), K1_LDS


F1 = 896


def k2(opt):
    o = Out()
    ACG = lambda j, i: 176 + (j * 2 + i) * 4
    ACS = lambda j, i: (j * 2 + i) * 4
    WB = lambda t, j: 64 + (t % 2) * 32 + j * 4
    XR = lambda t, i: 128 + (t % 8) * 8 + i * 4
    vA, vC, vW, vS, vT = 2, 4, 8, 12, 16
    vXs, vXN, vD, vP = 32, 64, 96, 112
    sWv, sRole, sRb, sCb, sA, sC, sW, sM0, sCnt, sTile = 50, 51, 52, 53, 54, 55, 56, 57, 58, 59
    G0 = 64 + F1 // 32
    o(kernel_head(K2N))
    if opt.get('stamp'): o('s_memrealtime s[94:95]')
    o('''s_cmp_ge_u32 s2, 256
    s_cbranch_scc1 k2_end
    s_load_dwordx2 s[4:5], s[0:1], 0
    s_load_dwordx2 s[6:7], s[0:1], 40
    s_load_dwordx2 s[60:61], s[0:1], 48
    s_load_dwordx2 s[62:63], s[0:1], 64
    s_load_dwordx2 s[64:65], s[0:1], 96
    s_load_dwordx2 s[66:67], s[0:1], 104
    s_load_dwordx2 s[68:69], s[0:1], 112
    s_load_dwordx2 s[70:71], s[0:1], 128
    v_lshrrev_b32 v24, 6, v0
    v_and_b32 v1, 63, v0
    v_lshrrev_b32 v25, 4, v1
    v_and_b32 v26, 15, v1''')
    o(f'''v_readfirstlane_b32 s{sWv}, v24
    s_and_b32 s72, s2, 7
    s_lshr_b32 s73, s2, 3
    s_and_b32 s{sRole}, s72, 1
    s_lshr_b32 s{sRb}, s72, 1
    s_lshl_b32 s{sRb}, s{sRb}, 2
    s_and_b32 s74, s73, 3
    s_add_u32 s{sRb}, s{sRb}, s74
    s_lshr_b32 s{sCb}, s73, 2
    s_lshl_b32 s{sTile}, s{sRb}, 3
    s_add_u32 s{sTile}, s{sTile}, s{sCb}
    s_lshl_b32 s{sTile}, s{sTile}, 2
    s_add_u32 s{sTile}, s{sTile}, s{sWv}
    s_lshl_b32 s74, s{sRb}, 13
    s_lshl_b32 s75, s{sWv}, 11
    s_add_u32 s74, s74, s75
    v_lshl_add_u32 v{vA}, v1, 4, s74
    s_lshl_b32 s{sM0}, s{sWv}, 12
    v_lshrrev_b32 v27, 3, v1
    s_lshl_b32 s74, s{sCb}, 7
    s_lshl_b32 s75, s{sWv}, 5
    s_add_u32 s74, s74, s75
    v_add_u32 v27, s74, v27
    v_lshlrev_b32 v27, 11, v27
    v_and_b32 v28, 7, v1
    v_xor_b32 v28, v28, v25
    v_lshl_add_u32 v{vC}, v28, 4, v27
    v_xor_b32 v{vC+1}, 64, v{vC}
    v_add_u32 v{vC+1}, 0x4000, v{vC+1}
    v_add_u32 v{vC+2}, 0x8000, v{vC}
    v_add_u32 v{vC+3}, 0x8000, v{vC+1}
    s_lshl_b32 s74, s{sWv}, 4
    v_add_u32 v27, s74, v25
    v_lshlrev_b32 v27, 11, v27
    s_lshl_b32 s74, s{sCb}, 8
    v_add_u32 v27, s74, v27
    v_lshrrev_b32 v28, 1, v26
    v_xor_b32 v28, v28, v25
    v_lshl_add_u32 v27, v28, 5, v27
    v_and_b32 v28, 1, v26
    v_lshl_add_u32 v{vW}, v28, 4, v27
    v_xor_b32 v{vW+1}, 128, v{vW}
    v_add_u32 v{vW+1}, 0x2000, v{vW+1}
    v_add_u32 v{vW+2}, 0x4000, v{vW}
    v_add_u32 v{vW+3}, 0x4000, v{vW+1}
    s_cmp_eq_u32 s{sRole}, 0
    s_cselect_b32 s{sA}, 0, {G0*131072}
    s_cselect_b32 s{sW}, 0, {F1*2048}
    s_mov_b32 s74, {G0*131072}
    s_cselect_b32 s74, s74, {A2_BYTES}
    s_mov_b32 s75, {F1*2048}
    s_cselect_b32 s75, s75, {3584*2048}
    s_mov_b32 s{sC}, 0
    s_lshl_b32 s76, s{sCb}, 8
    v_lshl_add_u32 v3, v25, 3, s76
    s_waitcnt lgkmcnt(0)''')
    srd(o, 8, 70, 's74', WS_A2)
    srd(o, 12, 6, 2 * MB)
    srd(o, 16, 64, 's75')
    srd(o, 20, 70, 4 * MB, WS_XN)
    srd(o, 24, 4, 4 * MB)
    srd(o, 28, 68, 8 * MB)
    srd(o, 32, 70, 8 * MB, WS_PART)
    srd(o, 36, 70, WS_USED)
    srd(o, 40, 62, 2048)
    srd(o, 44, 66, 2048)
    stamp(o, opt, 2, 0, 36, sWv, tmpv=(244, 245, 246))

    def dma(kind, part, st):
        base = (st % 4) * 16384
        tag = ('D', st)
        g = []
        for jj in ((0, 1) if part == 1 else (2, 3)):
            g.append([f's_add_u32 m0, s{sM0}, {base+1024*jj}'])
            if kind == 'C':
                g.append([VM(f'buffer_load_dwordx4 v{vC+jj}, s[12:15], s{sC} offen lds', tag)])
            else:
                g.append([VM(f'buffer_load_dwordx4 v{vW+jj}, s[16:19], s{sW} offen lds', tag)])
        if part == 2:
            g[3].append(f's_add_u32 s{sC}, s{sC}, 128' if kind == 'C' else f's_add_u32 s{sW}, s{sW}, 131072')
        return g

    def aloads(t):
        g = [[VM(f'buffer_load_dwordx4 {ar(XR(t, i), 4)}, v{vA}, s[8:11], s{sA} offen offset:{1024*i}', ('X', t))] for i in range(2)]
        g[1].append(f's_add_u32 s{sA}, s{sA}, 131072')
        return g

    def wreads(kind, t):
        st, hs = t // 2, t % 2
        so = (st % 4) * 16384
        r = []
        for j in range(8):
            if kind == 'C':
                r.append([DS(f'ds_read_b128 {ar(WB(t, j), 4)}, v{vS+hs} offset:{so+j*2048}', ('R', t))])
            else:
                r.append([DS(f'ds_read_b64_tr_b16 {ar(WB(t, j)+2*sec, 2)}, v{vT+j} offset:{so+hs*8192+sec*4096}', ('R', t)) for sec in range(2)])
        return r

    def flat(groups):
        out = []
        for g in groups:
            out += g
            if len(g) == 1 and isinstance(g[0], str) and 'm0' in g[0]:
                out.append('s_nop 0')
        return out

    def step(t, kind_of, key, extra=None):
        st, hs = t // 2, t % 2
        kind = kind_of(st)
        mf = []
        for j in range(8):
            for i in range(2):
                acc = ar(ACS(j, i), 4) if kind == 'C' else vr(ACG(j, i), 4)
                mf.append(f'v_mfma_f32_16x16x32_bf16 {acc}, {ar(WB(t, j), 4)}, {ar(XR(t, i), 4)}, {acc}')
        f = {}
        place(f, -1, Wait((key, 's', t % 8), vm=[('X', t)], lg='all'))
        rd = wreads(kind_of((t + 1) // 2), t + 1)
        for j, r in enumerate(rd):
            place(f, j + (j // 2), *r)
        tgt = st + 2 if hs == 0 else st + 3
        vmg = dma(kind_of(tgt), 2 if hs == 0 else 1, tgt)
        xg = aloads(t + 7)
        for g, grp in zip([2, 5, 8, 11, 12, 13], [xg[0], vmg[0], vmg[1], xg[1], vmg[2], vmg[3]]):
            place(f, g, *grp)
        if extra:
            for g, its in extra.items():
                place(f, g, *its)
        if hs == 0:
            place(f, 15, Wait((key, 'b', t % 8), vm=[('D', st + 1)]), 's_barrier')
        return interleave(mf, f)

    ldsbase = [f'''v_lshrrev_b32 v27, 1, v26
    v_xor_b32 v28, v27, v25
    v_lshlrev_b32 v28, 4, v28
    v_lshl_add_u32 v{vS}, v26, 7, v28
    v_xor_b32 v{vS+1}, 64, v{vS}
    v_lshrrev_b32 v27, 2, v26
    v_lshl_add_u32 v27, v25, 2, v27
    v_and_b32 v28, 3, v26
    v_lshlrev_b32 v28, 3, v28
    v_lshl_add_u32 v28, v27, 8, v28
    v_and_b32 v27, 7, v27''']
    for j in range(8):
        ldsbase.append(f'''v_xor_b32 v29, {j}, v27
        v_lshl_add_u32 v{vT+j}, v29, 5, v28''')

    def prologue(kind, key, first):
        p = list(first)
        p += flat(dma(kind, 1, 0)) + flat(dma(kind, 2, 0)) + flat(aloads(0)) + flat(aloads(1))
        p += flat(dma(kind, 1, 1)) + flat(dma(kind, 2, 1)) + flat(aloads(2)) + flat(aloads(3))
        p += flat(dma(kind, 1, 2)) + flat(aloads(4)) + flat(aloads(5)) + flat(aloads(6))
        return p

    NS0, NG0, NG1 = 32, F1 // 64, (3584 - F1) // 64
    assert NG0 % 4 == 2 and NG1 % 4 == 2
    kind0 = lambda st: 'C' if st < NS0 else 'W'
    kind1 = lambda st: 'W'
    p0 = prologue('C', 'p0', [])
    p0 += ldsbase
    p0 += [f'v_accvgpr_write_b32 a{r}, 0' for r in range(64)]
    p0 += [f'v_mov_b32 v{r}, 0' for r in range(176, 240)]
    p0 += [Wait('p0', vm=[('D', 0)]), 's_barrier'] + [x for g in wreads('C', 0) for x in g]
    sw = [f's_cmp_eq_u32 s{sC}, 2048', 's_cselect_b32 s12, s60, s12', 's_cselect_b32 s13, s61, s13', f's_cselect_b32 s{sC}, 0, s{sC}']
    ex = []
    for j in range(8):
        ex.append(VM(f'buffer_load_dwordx2 {vr(vD+2*j, 2)}, v3, s[40:43], 0 offen offset:{32*j}', 'E'))
    for i in range(2):
        for j in range(8):
            ex.append(VM(f'buffer_load_dwordx2 {vr(vXN+(j*2+i)*2, 2)}, v30, s[20:23], {["0", "s80", "s81", "s82"][j//2]} offen offset:{1024*i+512*(j&1)}', 'E'))
    for i in range(2):
        for j in range(8):
            ex.append(VM(f'buffer_load_dwordx2 {vr(vXs+(j*2+i)*2, 2)}, v31, s[24:27], {["0", "s83"][i]} offen offset:{32*j}', 'E'))
    body0 = []
    for t in range(2 * (NS0 + NG0)):
        st = t // 2
        extra = {}
        key = 'S'
        if st < 28:
            if t % 8 == 2:
                extra[14] = sw
        elif st < 32:
            key = 'T'
            n = t - 56
            extra[14] = ex[5 * n:5 * n + 5]
        else:
            key = 'G'
        body0.append(step(t, kind0, key, extra))
    first = [VM(f'buffer_load_dwordx2 {vr(vD+2*j, 2)}, v3, s[44:47], 0 offen offset:{32*j}', 'c') for j in range(8)]
    p1 = prologue('W', 'p1', first) + ldsbase + [Wait('p1c', vm=['c'])]
    for j in range(8):
        for i in range(2):
            a = ACG(j, i)
            p1.append(f'''v_lshlrev_b32 v{a}, 16, v{vD+2*j}
            v_and_b32 v{a+1}, 0xffff0000, v{vD+2*j}
            v_lshlrev_b32 v{a+2}, 16, v{vD+2*j+1}
            v_and_b32 v{a+3}, 0xffff0000, v{vD+2*j+1}''')
    p1 += [Wait('p1', vm=[('D', 0)]), 's_barrier'] + [x for g in wreads('W', 0) for x in g]
    body1 = [step(t, kind1, 'G') for t in range(2 * NG1)]
    tr = Tracker()
    tr.run(p0)
    for b in body0:
        tr.run(b)
    tr.run([Wait('e0', vm=['E'])])
    tr1 = Tracker()
    tr1.res = tr.res
    tr1.run(p1)
    for b in body1:
        tr1.run(b)

    o(f'''s_cmp_lg_u32 s{sRole}, 0
    s_cbranch_scc1 k2_role1''')
    o(f'''s_lshr_b32 s72, s{sWv}, 1
    s_lshl_b32 s73, s{sRb}, 1
    s_add_u32 s72, s72, s73
    s_and_b32 s73, s{sWv}, 1
    s_lshl_b32 s74, s72, 12
    s_lshl_b32 s75, s73, 11
    s_add_u32 s74, s74, s75
    s_lshl_b32 s75, s{sCb}, 19
    s_add_u32 s74, s74, s75
    v_lshrrev_b32 v27, 1, v25
    v_lshl_add_u32 v27, v27, 4, v26
    v_lshlrev_b32 v27, 4, v27
    v_and_b32 v28, 1, v25
    v_lshl_add_u32 v27, v28, 3, v27
    v_add_u32 v30, s74, v27
    s_lshl_b32 s74, s72, 6
    s_lshl_b32 s75, s73, 3
    s_add_u32 s74, s74, s75
    v_lshrrev_b32 v27, 2, v26
    v_lshlrev_b32 v27, 4, v27
    v_and_b32 v28, 3, v26
    v_add3_u32 v27, v27, v28, s74
    v_lshl_add_u32 v31, v27, 11, v3
    s_mov_b32 s80, 0x20000
    s_mov_b32 s81, 0x40000
    s_mov_b32 s82, 0x60000
    s_mov_b32 s83, 0x2000''')
    o.items(tr, p0)
    o(f's_mov_b32 s{sCnt}, 7\nk2_sloop:')
    for t in range(8, 16):
        o.items(tr, body0[t])
    o(f'''s_sub_u32 s{sCnt}, s{sCnt}, 1
    s_cmp_lg_u32 s{sCnt}, 0
    s_cbranch_scc1 k2_sloop''')
    for t in range(56, 64):
        o.items(tr, body0[t])
    o(f's_mov_b32 s{sCnt}, {NG0//4+1}\ns_branch k2_gloop')
    o('k2_role1:')
    o.items(tr1, p1)
    o(f's_mov_b32 s{sCnt}, {NG1//4+1}')
    o('k2_gloop:')
    for t in range(8, 12):
        o.items(tr, body1[t])
    o(f'''s_sub_u32 s{sCnt}, s{sCnt}, 1
    s_cmp_eq_u32 s{sCnt}, 0
    s_cbranch_scc1 k2_gdone''')
    for t in range(12, 16):
        o.items(tr, body1[t])
    o('s_branch k2_gloop\nk2_gdone:')
    stamp(o, opt, 2, 1, 36, sWv, tmpv=(244, 245, 246))
    o(f'''s_lshl_b32 s72, s{sTile}, 14
    v_lshl_add_u32 v27, v1, 4, s72
    s_lshl_b32 s72, s{sTile}, 6
    s_add_u32 s72, s72, {WS_FLAG}
    v_mov_b32 v28, s72
    s_movk_i32 s84, 0x1000
    s_movk_i32 s85, 0x2000
    s_movk_i32 s86, 0x3000
    s_cmp_eq_u32 s{sRole}, 0
    s_cbranch_scc1 k2_fin''')
    so4 = ['0', 's84', 's85', 's86']
    o('s_nop 7')
    for n in range(16):
        o(f'buffer_store_dwordx4 {vr(176+4*n, 4)}, v27, s[32:35], {so4[n//4]} offen offset:{1024*(n%4)} sc1')
    o('''v_mov_b32 v29, 1
    s_waitcnt vmcnt(0)
    s_mov_b64 exec, 1
    buffer_store_dword v29, v28, s[36:39], 0 offen sc1
    s_mov_b64 exec, -1''')
    stamp(o, opt, 2, 2, 36, sWv, tmpv=(244, 245, 246))
    o('s_endpgm')
    o('k2_fin:')
    o(f'''v_lshlrev_b32 v31, 1, v31
    s_mov_b32 s83, 0x4000
    s_mov_b32 s88, {hexf(-LOG2E)}
    s_mov_b32 s89, 0xffff0000
    s_mov_b32 s73, 0x100000
    k2_poll:
    buffer_load_dword v29, v28, s[36:39], 0 offen sc1
    s_waitcnt vmcnt(0)
    v_readfirstlane_b32 s72, v29
    s_sub_u32 s73, s73, 1
    s_cselect_b32 s72, 1, s72
    s_cmp_eq_u32 s72, 0
    s_cbranch_scc1 k2_poll''')
    for n in range(16):
        o(f'buffer_load_dwordx4 {vr(vP+4*n, 4)}, v27, s[32:35], {so4[n//4]} offen offset:{1024*(n%4)} sc1')
    for j in range(8):
        o(f'''v_lshlrev_b32 v4, 16, v{vD+2*j}
        v_and_b32 v5, s89, v{vD+2*j}
        v_lshlrev_b32 v6, 16, v{vD+2*j+1}
        v_and_b32 v7, s89, v{vD+2*j+1}''')
        for i in range(2):
            n = j * 2 + i
            T, S, XX = 240, 8, 12
            xn, xs = vXN + 2 * n, vXs + 2 * n
            o(f'''v_lshlrev_b32 v{T}, 16, v{xn}
            v_and_b32 v{T+1}, s89, v{xn}
            v_lshlrev_b32 v{T+2}, 16, v{xn+1}
            v_and_b32 v{T+3}, s89, v{xn+1}
            v_accvgpr_read_b32 v{S}, a{ACS(j, i)}
            v_accvgpr_read_b32 v{S+1}, a{ACS(j, i)+1}
            v_accvgpr_read_b32 v{S+2}, a{ACS(j, i)+2}
            v_accvgpr_read_b32 v{S+3}, a{ACS(j, i)+3}
            v_pk_fma_f32 {vr(S, 2)}, {vr(T, 2)}, v[4:5], {vr(S, 2)}
            v_pk_fma_f32 {vr(S+2, 2)}, {vr(T+2, 2)}, v[6:7], {vr(S+2, 2)}
            v_lshlrev_b32 v{XX}, 16, v{xs}
            v_and_b32 v{XX+1}, s89, v{xs}
            v_lshlrev_b32 v{XX+2}, 16, v{xs+1}
            v_and_b32 v{XX+3}, s89, v{xs+1}
            s_waitcnt vmcnt({min(15-n, 15) + n})''')
            g, p = ACG(j, i), vP + 4 * n
            o(f'''v_pk_add_f32 {vr(g, 2)}, {vr(g, 2)}, {vr(p, 2)}
            v_pk_add_f32 {vr(g+2, 2)}, {vr(g+2, 2)}, {vr(p+2, 2)}
            v_pk_mul_f32 {vr(T, 2)}, {vr(g, 2)}, s[88:89] op_sel_hi:[1,0]
            v_pk_mul_f32 {vr(T+2, 2)}, {vr(g+2, 2)}, s[88:89] op_sel_hi:[1,0]
            v_exp_f32 v{T}, v{T}
            v_exp_f32 v{T+1}, v{T+1}
            v_exp_f32 v{T+2}, v{T+2}
            v_exp_f32 v{T+3}, v{T+3}
            v_pk_mul_f32 {vr(S, 2)}, {vr(S, 2)}, {vr(g, 2)}
            v_pk_add_f32 {vr(T, 2)}, {vr(T, 2)}, 1.0 op_sel_hi:[1,0]
            v_pk_add_f32 {vr(T+2, 2)}, {vr(T+2, 2)}, 1.0 op_sel_hi:[1,0]
            v_rcp_f32 v{T}, v{T}
            v_rcp_f32 v{T+1}, v{T+1}
            v_rcp_f32 v{T+2}, v{T+2}
            v_rcp_f32 v{T+3}, v{T+3}
            v_pk_mul_f32 {vr(S+2, 2)}, {vr(S+2, 2)}, {vr(g+2, 2)}
            v_pk_fma_f32 {vr(g, 2)}, {vr(S, 2)}, {vr(T, 2)}, {vr(XX, 2)}
            v_pk_fma_f32 {vr(g+2, 2)}, {vr(S+2, 2)}, {vr(T+2, 2)}, {vr(XX+2, 2)}
            buffer_store_dwordx4 {vr(g, 4)}, v31, s[28:31], {["0", "s83"][i]} offen offset:{64*j}''')
    stamp(o, opt, 2, 2, 36, sWv, tmpv=(244, 245, 246))
    o('k2_end:\ns_endpgm')
    return o.text(), descriptor(K2N, 256, 192), 65536


def build(opt):
    parts = [k0(opt), k1(opt), k2(opt)]
    names = [K0N, K1N, K2N]
    n = opt.get('nk', 3)
    head = '; S5 state-space scan + channel MLP block, gfx950. Three launches share d_ws:\n'
    head += ';  1. LayerNorm -> xn in MFMA fragment order, second-LayerNorm scale, hand-off words reset\n'
    head += ';  2. [xn] x [B_re|B_im|w1], exact chunked scan (carry handed between row blocks), GELU\n'
    head += ';  3. [h|H] x [C|w2] with K split over workgroup pairs, SiLU gate and residual\n'
    for (txt, desc, lds), name in list(zip(parts, names))[:n]:
        head += f'; @launch kernel={name} grid=(256,1,1) block=(256,1,1) lds={lds}\n'
    s = head + '.amdgcn_target "amdgcn-amd-amdhsa--gfx950"\n.text\n'
    for txt, desc, lds in parts:
        s += txt
    s += '.section .rodata,"a"\n'
    for txt, desc, lds in parts:
        s += desc
    return s


if __name__ == '__main__':
    opt = {}
    out = sys.argv[1] if len(sys.argv) > 1 else 'k.s'
    for a in sys.argv[2:]:
        k, v = a.split('=')
        opt[k] = eval(v)
    open(out, 'w').write(build(opt))
```
